```python
import torch

def _softmax(x, axis=-1):
    return torch.softmax(x, dim=axis)
def _gelu(x):
    return torch.nn.functional.gelu(x, approximate="tanh")
def _silu(x):
    return torch.nn.functional.silu(x)
def _sigmoid(x):
    return torch.sigmoid(x)
def _layernorm(x, axis=-1, eps=1e-5):
    m = x.mean(dim=axis, keepdim=True)
    v = x.var(dim=axis, keepdim=True, unbiased=False)
    return (x - m) / torch.sqrt(v + eps)
def _scatter_add(tgt, idx, src, axis=0):
    return tgt.clone().index_add_(axis, idx, src)
def _segment_sum(src, seg, n):
    out = torch.zeros((n,) + src.shape[1:], dtype=src.dtype)
    return out.index_add_(0, seg, src)
def _pad(x, pw):
    flat = tuple(v for pair in reversed(pw) for v in pair)
    return torch.nn.functional.pad(x, flat)

kernel_name = 'interleave_layers__gqa_block_cached__glu_gated_swiglu__decode'

def setup_inputs():

    _w = (lambda a: (lambda t: t.to(torch.bfloat16) if t.is_floating_point() else t)(torch.as_tensor(a)))
    def _A_setup():
        B, Sq, D = 1, 1, 512
        Hq, Hkv, Sk, Dh = 32, 8, 65536, 128
        assert Hq % Hkv == 0, (Hq, Hkv)
        return {
            "x": _w((lambda *s: torch.randn(*s, dtype=torch.bfloat16) * 0.05)(B, Sq, D)),
            "k_cache": _w((lambda *s: torch.randn(*s, dtype=torch.bfloat16) * 0.8)(B, Hkv, Sk, Dh)),
            "v_cache": _w((lambda *s: torch.randn(*s, dtype=torch.bfloat16) * 1.6)(B, Hkv, Sk, Dh)),
            "wq": _w((lambda *s: torch.randn(*s, dtype=torch.bfloat16) * 0.8)(D, Hq * Dh) * (D ** -0.5)),
            "wo": _w((lambda *s: torch.randn(*s, dtype=torch.bfloat16) * 1.6)(Hq * Dh, D) * ((Hq * Dh) ** -0.5)),
        }
    _A_in = _A_setup()

    def _B_setup():
        B, S, D, F = 1, 1, 512, 1792
        return {
            "x": _w((lambda *s: torch.randn(*s, dtype=torch.bfloat16) * 0.05)(B, S, D)),
            "w1": _w((lambda *s: torch.randn(*s, dtype=torch.bfloat16) * 0.4)(D, F) * (2.0 / D) ** 0.5),
            "w3": _w((lambda *s: torch.randn(*s, dtype=torch.bfloat16) * 0.4)(D, F) * (2.0 / D) ** 0.5),
            "w2": _w((lambda *s: torch.randn(*s, dtype=torch.bfloat16) * 0.4)(F, D) * (2.0 / F) ** 0.5),
        }
    _B_in = _B_setup()

    return {
        "A_x": _A_in["x"],
        "A_k_cache": _A_in["k_cache"],
        "A_v_cache": _A_in["v_cache"],
        "A_wq": _A_in["wq"],
        "A_wo": _A_in["wo"],
        "B_x": _B_in["x"],
        "B_w1": _B_in["w1"],
        "B_w3": _B_in["w3"],
        "B_w2": _B_in["w2"],
    }

def reference(A_x, A_k_cache, A_v_cache, A_wq, A_wo, B_x, B_w1, B_w3, B_w2):
    def _A_ref(x, k_cache, v_cache, wq, wo):
        B, Sq, D = x.shape
        Hq, Dh = 32, 128
        Hkv = k_cache.shape[1]
        rep = Hq // Hkv
        q = (lambda x, *d: x.permute(*d))((x @ wq).reshape(B, Sq, Hq, Dh), 0, 2, 1, 3)
        k = (lambda x, n, axis: torch.repeat_interleave(x, n, dim=axis))(k_cache, rep, axis=1)
        v = (lambda x, n, axis: torch.repeat_interleave(x, n, dim=axis))(v_cache, rep, axis=1)
        scores = torch.einsum("bhqd,bhkd->bhqk", q, k) * (Dh ** -0.5)
        p = _softmax(scores, axis=-1)
        o = torch.einsum("bhqk,bhkd->bhqd", p, v)
        return (lambda x, *d: x.permute(*d))(o, 0, 2, 1, 3).reshape(B, Sq, Hq * Dh) @ wo

    def _B_ref(x, w1, w3, w2):
        gate = torch.einsum("bsd,df->bsf", x, w1)
        up = torch.einsum("bsd,df->bsf", x, w3)
        h = _silu(gate) * up
        out = torch.einsum("bsf,fd->bsd", h, w2)
        return out

    x = A_x
    x = x + _A_ref(_layernorm(x, axis=-1), A_k_cache, A_v_cache, A_wq, A_wo)
    x = x + _B_ref(_layernorm(x, axis=-1), B_w1, B_w3, B_w2)
    x = x + _A_ref(_layernorm(x, axis=-1), A_k_cache, A_v_cache, A_wq, A_wo)
    x = x + _B_ref(_layernorm(x, axis=-1), B_w1, B_w3, B_w2)
    return x
```

```python
import sys, math, struct

KNAME = "interleave_layers__gqa_block_cached__glu_gated_swiglu__decode_kernel"

HEADER = """; Kernarg layout for this problem (96 bytes, ptrs only, base s[0:1]):
"""


def f32bits(x):
    return struct.unpack("<I", struct.pack("<f", x))[0]


class Cfg:
    NW = 88
    NL = 37
    DEPTH1 = 56
    DEPTH2 = 56
    FK1 = "nt"
    FV1 = "nt"
    FV2 = "nt"
    FW = ""
    RESIDENT = True
    STAMP = False
    SPIN = 200000


ITS = 0x100000
QB, OB, P1, HB, P2, REC = 0x0, 0x2000, 0x6000, 0xA000, 0xC000, 0x10000
STAMP_OFF = 0x400000
L_XL = 0
L_RED = 2048
L_ML = 3072
L_OW = 3200
L_TILES = 3200 + 8192

S_K, S_V, S_WQ, S_WO, S_W1, S_W3, S_W2, S_X, S_OUT, S_DBG, S_WS = [8 + 4 * i for i in range(11)]
S_WAVE, S_KVH, S_C, S_T0, S_T1, S_T2, S_SPIN, S_SOFF = 52, 53, 54, 55, 56, 57, 58, 59
S_EX = 60
S_CB, S_KS, S_CN = 62, 63, 64
S_R0, S_R1 = 65, 66
S_STAMP = 68
S_LOFF = 70

V_TID, V_LANE, V_KOFF, V_VOFF = 0, 1, 2, 3
V_Q = 4
V_O = 8
V_B = 16
V_M0, V_M1 = 20, 21
V_XR = 22
V_BP = 24
V_T = 26
V_Y = 32
V_D = 64
V_U = 80
V_LT = 25

SCALE = (128.0 ** -0.5) * math.log2(math.e)
LOG2E = math.log2(math.e)


def srd(s):
    return "s[%d:%d]" % (s, s + 3)


def vr(a, n=1):
    return "v%d" % a if n == 1 else "v[%d:%d]" % (a, a + n - 1)


class Tile:
    def __init__(self, kind, base):
        self.kind, self.base = kind, base

    def r(self, lo=0, n=4):
        return "%s[%d:%d]" % (self.kind, self.base + lo, self.base + lo + n - 1)


class G:
    def __init__(self, cfg):
        self.cfg = cfg
        self.L = []
        self.vm = 0
        self.vm_done = 0
        self.nlabel = 0
        self.nstamp = 0

    def e(self, s):
        self.L.append("  " + s)

    def c(self, s):
        self.L.append("  ; " + s)

    def label(self, name):
        self.L.append(name + ":")

    def newlabel(self, p):
        self.nlabel += 1
        return "L_%s_%d" % (p, self.nlabel)

    def vmem(self, s, counted=True):
        self.e(s)
        if counted:
            self.vm += 1
            return self.vm - 1
        return None

    def wait_vm(self, seq):
        if seq < self.vm_done:
            return
        n = self.vm - seq - 1
        assert n <= 63, n
        self.e("s_waitcnt vmcnt(%d)" % n)
        self.vm_done = seq + 1

    def drain(self):
        self.e("s_waitcnt vmcnt(0)")
        self.vm_done = self.vm

    def lgkm0(self):
        self.e("s_waitcnt lgkmcnt(0)")

    def nop(self, n):
        while n > 0:
            k = min(n, 16)
            self.e("s_nop %d" % (k - 1))
            n -= k

    def stamp(self):
        if not self.cfg.STAMP:
            return
        i = self.nstamp
        self.nstamp += 1
        self.e("s_memrealtime s[%d:%d]" % (S_STAMP, S_STAMP + 1))
        self.lgkm0()
        self.e("v_mov_b32 v%d, s%d" % (V_U + 6, S_STAMP))
        self.e("s_lshl_b32 s%d, s2, 10" % S_T0)
        self.e("s_lshl_b32 s%d, s%d, 8" % (S_T1, S_WAVE))
        self.e("s_add_u32 s%d, s%d, s%d" % (S_T0, S_T0, S_T1))
        self.e("s_add_u32 s%d, s%d, 0x%x" % (S_T0, S_T0, STAMP_OFF + 4 * i))
        self.e("v_mov_b32 v%d, 0" % (V_U + 7))
        self.vmem("buffer_store_dword v%d, v%d, %s, s%d offen" % (V_U + 6, V_U + 7, srd(S_WS), S_T0))

    def bf16r(self, x, t):
        self.e("v_cvt_pk_bf16_f32 v%d, v%d, v%d" % (t, x, x))
        self.e("v_lshlrev_b32 v%d, 16, v%d" % (x, t))

    def poll(self, issue, regs, tmp, name, counted_after=None):
        lab = self.newlabel(name)
        ok = lab + "_ok"
        if counted_after is not None:
            seq = issue(True)
            counted_after()
            self.wait_vm(seq)
            self._check_sent(regs, tmp)
            self.e("s_cbranch_vccz %s" % ok)
            self.label(lab)
            self.e("s_sleep 1")
            issue(False)
            self.e("s_waitcnt vmcnt(0)")
            self._check_sent(regs, tmp)
            self.e("s_cbranch_vccz %s" % ok)
            self.e("s_sub_u32 s%d, s%d, 1" % (S_SPIN, S_SPIN))
            self.e("s_cmp_gt_i32 s%d, 0" % S_SPIN)
            self.e("s_cbranch_scc1 %s" % lab)
            self.label(ok)
        else:
            self.label(lab)
            issue(False)
            self.e("s_waitcnt vmcnt(0)")
            self._check_sent(regs, tmp)
            self.e("s_cbranch_vccz %s" % ok)
            self.e("s_sub_u32 s%d, s%d, 1" % (S_SPIN, S_SPIN))
            self.e("s_cmp_gt_i32 s%d, 0" % S_SPIN)
            self.e("s_cbranch_scc1 %s" % lab)
            self.label(ok)
            self.vm_done = self.vm

    def _check_sent(self, regs, tmp):
        regs = list(regs)
        if len(regs) == 1:
            m = regs[0]
        else:
            first = True
            i = 0
            while i < len(regs):
                if first:
                    if len(regs) >= 3:
                        self.e("v_max3_u32 v%d, v%d, v%d, v%d" % (tmp, regs[0], regs[1], regs[2]))
                        i = 3
                    else:
                        self.e("v_max_u32 v%d, v%d, v%d" % (tmp, regs[0], regs[1]))
                        i = 2
                    first = False
                elif len(regs) - i >= 2:
                    self.e("v_max3_u32 v%d, v%d, v%d, v%d" % (tmp, tmp, regs[i], regs[i + 1]))
                    i += 2
                else:
                    self.e("v_max_u32 v%d, v%d, v%d" % (tmp, tmp, regs[i]))
                    i += 1
            m = tmp
        self.e("v_cmp_eq_u32 vcc, -1, v%d" % m)

    def allred_rows(self, x, t, op):
        self.e("v_mov_b32 v%d, v%d" % (t, x))
        self.nop(2)
        self.e("v_permlane32_swap_b32 v%d, v%d" % (x, t))
        self.nop(1)
        self.e("%s v%d, v%d, v%d" % (op, x, x, t))
        self.e("v_mov_b32 v%d, v%d" % (t, x))
        self.nop(2)
        self.e("v_permlane16_swap_b32 v%d, v%d" % (x, t))
        self.nop(1)
        self.e("%s v%d, v%d, v%d" % (op, x, x, t))

    def ror_red(self, regs, rors, op):
        for n in rors:
            pad = max(0, 3 - len(regs))
            self.nop(pad if pad else 0)
            for x in regs:
                self.e("%s_dpp v%d, v%d, v%d row_ror:%d row_mask:0xf bank_mask:0xf" % (op, x, x, x, n))

    def gemv8(self, wtiles, xregs, acc, t0, t1):
        for i, (w, x) in enumerate(zip(wtiles, xregs)):
            for d in range(4):
                self.e("v_lshlrev_b32 v%d, 16, v%d" % (t0, w + d))
                self.e("v_and_b32 v%d, 0xffff0000, v%d" % (t1, w + d))
                op = "v_mul_f32" if i == 0 else "v_fmac_f32"
                self.e("%s v%d, v%d, v%d" % (op, acc + 2 * d, t0, x))
                self.e("%s v%d, v%d, v%d" % (op, acc + 2 * d + 1, t1, x))

    def reduce8_to_lds(self, acc, taddr, red):
        self.nop(2)
        for j in range(4):
            self.e("v_permlane32_swap_b32 v%d, v%d" % (acc + j, acc + j + 4))
        self.nop(1)
        for j in range(4):
            self.e("v_add_f32 v%d, v%d, v%d" % (acc + j, acc + j, acc + j + 4))
        self.nop(2)
        for j in range(2):
            self.e("v_permlane16_swap_b32 v%d, v%d" % (acc + j, acc + j + 2))
        self.nop(1)
        for j in range(2):
            self.e("v_add_f32 v%d, v%d, v%d" % (acc + j, acc + j, acc + j + 2))
        self.ror_red([acc, acc + 1], [8, 4, 2], "v_add_f32")
        self.e("v_and_b32 v%d, 1, v%d" % (taddr, V_LANE))
        self.e("v_lshlrev_b32 v%d, 5, v%d" % (taddr, taddr))
        self.e("v_lshrrev_b32 v%d, 4, v%d" % (acc + 2, V_LANE))
        self.e("v_lshl_add_u32 v%d, v%d, 3, v%d" % (taddr, acc + 2, taddr))
        self.e("s_lshl_b32 s%d, s%d, 6" % (S_T0, S_WAVE))
        self.e("v_add_u32 v%d, s%d, v%d" % (taddr, S_T0, taddr))
        self.e("ds_write_b64 v%d, %s offset:%d" % (taddr, vr(acc, 2), red))
        self.lgkm0()
        self.e("s_barrier")

    def sum4_pairs(self, dst, tmp, taddr, red):
        self.e("v_and_b32 v%d, 7, v%d" % (taddr, V_LANE))
        self.e("v_lshlrev_b32 v%d, 3, v%d" % (taddr, taddr))
        for w in range(4):
            self.e("ds_read_b64 %s, v%d offset:%d" % (vr(tmp + 2 * w, 2), taddr, red + 64 * w))
        self.lgkm0()
        for k in range(2):
            self.e("v_add_f32 v%d, v%d, v%d" % (tmp + k, tmp + k, tmp + 2 + k))
            self.e("v_add_f32 v%d, v%d, v%d" % (tmp + 4 + k, tmp + 4 + k, tmp + 6 + k))
        for k in range(2):
            self.e("v_add_f32 v%d, v%d, v%d" % (dst + k, tmp + k, tmp + 4 + k))

    def exec_lanes(self, n):
        self.e("s_mov_b64 exec, 0x%x" % ((1 << n) - 1))

    def exec_all(self):
        self.e("s_mov_b64 exec, -1")

    def layernorm(self, xs, mine, nmine, t):
        piv, s1, s2, a, b = t + 5, t, t + 1, t + 2, t + 3
        for i in range(8):
            self.e("v_sub_f32 v%d, v%d, v%d" % (xs + i, xs + i, piv))
        self.e("v_add_f32 v%d, v%d, v%d" % (s1, xs, xs + 1))
        self.e("v_mul_f32 v%d, v%d, v%d" % (s2, xs, xs))
        for i in range(1, 8):
            if i >= 2:
                self.e("v_add_f32 v%d, v%d, v%d" % (s1, s1, xs + i))
            self.e("v_fmac_f32 v%d, v%d, v%d" % (s2, xs + i, xs + i))
        self.ror_red([s1, s2], [8, 4, 2, 1], "v_add_f32")
        self.allred_rows(s1, a, "v_add_f32")
        self.allred_rows(s2, a, "v_add_f32")
        inv = f32bits(1.0 / 512)
        self.e("v_mul_f32 v%d, 0x%x, v%d" % (s1, inv, s1))
        self.e("v_mul_f32 v%d, 0x%x, v%d" % (s2, inv, s2))
        self.e("v_fma_f32 v%d, -v%d, v%d, v%d" % (s2, s1, s1, s2))
        self.e("v_max_f32 v%d, 0, v%d" % (s2, s2))
        self.e("v_add_f32 v%d, v%d, v%d" % (s1, s1, piv))
        self.bf16r(s1, a)
        self.bf16r(s2, a)
        self.e("v_add_f32 v%d, 0x%x, v%d" % (s2, f32bits(1e-5), s2))
        self.bf16r(s2, a)
        self.e("v_sqrt_f32 v%d, v%d" % (s2, s2))
        self.nop(1)
        self.bf16r(s2, a)
        self.e("v_rcp_f32 v%d, v%d" % (s2, s2))
        for i in range(nmine):
            self.e("v_sub_f32 v%d, v%d, v%d" % (mine + i, mine + i, s1))
            self.bf16r(mine + i, a)
        for i in range(nmine):
            self.e("v_mul_f32 v%d, v%d, v%d" % (mine + i, mine + i, s2))
            self.bf16r(mine + i, a)


def generate(cfg):
    g = G(cfg)
    e = g.e
    NW, NL = cfg.NW, cfg.NL
    regtiles = [Tile("a", 4 * i) for i in range(64)] + [Tile("v", b) for b in range(NW, 256, 4)]
    NRT = len(regtiles)
    if cfg.RESIDENT:
        NKL = NL
        NKR = 128 - NKL
        NVR = NRT - NKR
    else:
        NKL, NKR, NVR = 0, 0, min(NRT, 56)
    assert NVR >= 8
    khome = regtiles[:NKR]
    ring = regtiles[NKR:NKR + NVR]
    lds_bytes = L_TILES + 4 * NL * 1024
    assert lds_bytes <= 163840

    out = [HEADER + "; @launch grid=(256,1,1) block=(256,1,1) lds=%d" % lds_bytes]
    out.append('.amdgcn_target "amdgcn-amd-amdhsa--gfx950"\n.text\n.globl %s\n.p2align 8\n.type %s,@function\n%s:' % (KNAME, KNAME, KNAME))

    e("s_cmp_ge_u32 s2, 256")
    e("s_cbranch_scc1 L_end")
    e("s_load_dwordx16 s[72:87], s[0:1], 0")
    e("s_load_dwordx8 s[88:95], s[0:1], 64")
    e("v_and_b32 v%d, 63, v0" % V_LANE)
    e("v_lshrrev_b32 v%d, 6, v0" % V_T)
    e("s_nop 0")
    e("v_readfirstlane_b32 s%d, v%d" % (S_WAVE, V_T))
    e("s_and_b32 s%d, s2, 7" % S_KVH)
    e("s_lshr_b32 s%d, s2, 3" % S_C)
    e("s_mov_b32 s%d, %d" % (S_SPIN, cfg.SPIN))
    e("s_mul_i32 s%d, s%d, 28" % (S_CB, S_KVH))
    e("s_add_u32 s%d, s%d, s%d" % (S_CB, S_CB, S_C))
    e("s_lshr_b32 s%d, s2, 5" % S_KS)
    e("s_and_b32 s%d, s%d, 3" % (S_CN, S_C))
    e("s_lshl_b32 s%d, s%d, 2" % (S_T0, S_KVH))
    e("s_or_b32 s%d, s%d, s%d" % (S_CN, S_CN, S_T0))
    g.lgkm0()
    for (s, src, nbytes) in [(S_X, 72, 1024), (S_K, 74, 1 << 27), (S_V, 76, 1 << 27), (S_WQ, 78, 512 * 4096 * 2),
                             (S_WO, 80, 4096 * 512 * 2), (S_W1, 84, 512 * 1792 * 2), (S_W3, 86, 512 * 1792 * 2),
                             (S_W2, 88, 1792 * 512 * 2), (S_OUT, 90, 1024), (S_DBG, 92, 256), (S_WS, 94, 1 << 29)]:
        e("s_mov_b32 s%d, s%d" % (s, src))
        e("s_and_b32 s%d, s%d, 0xffff" % (s + 1, src + 1))
        e("s_mov_b32 s%d, 0x%x" % (s + 2, nbytes))
        e("s_mov_b32 s%d, 0x00020000" % (s + 3))
    e("s_lshl_b32 s%d, s%d, 24" % (S_T0, S_KVH))
    e("s_lshl_b32 s%d, s%d, 19" % (S_T1, S_C))
    e("s_add_u32 s%d, s%d, s%d" % (S_T0, S_T0, S_T1))
    e("s_lshl_b32 s%d, s%d, 17" % (S_T1, S_WAVE))
    e("s_add_u32 s%d, s%d, s%d" % (S_T0, S_T0, S_T1))
    e("v_lshlrev_b32 v%d, 4, v%d" % (V_VOFF, V_LANE))
    e("s_mul_i32 s%d, s%d, %d" % (S_T1, S_WAVE, NL * 1024))
    e("s_add_u32 s%d, s%d, %d" % (S_T1, S_T1, L_TILES))
    e("v_add_u32 v%d, s%d, v%d" % (V_LT, S_T1, V_VOFF))
    e("v_add_u32 v%d, s%d, v%d" % (V_VOFF, S_T0, V_VOFF))
    e("v_bfe_u32 v%d, v%d, 2, 2" % (V_T, V_LANE))
    e("v_lshlrev_b32 v%d, 8, v%d" % (V_KOFF, V_T))
    e("v_lshrrev_b32 v%d, 4, v%d" % (V_T + 1, V_LANE))
    e("v_lshl_add_u32 v%d, v%d, 6, v%d" % (V_KOFF, V_T + 1, V_KOFF))
    e("v_and_b32 v%d, 3, v%d" % (V_T + 2, V_LANE))
    e("v_lshl_add_u32 v%d, v%d, 4, v%d" % (V_KOFF, V_T + 2, V_KOFF))
    e("v_add_u32 v%d, s%d, v%d" % (V_KOFF, S_T0, V_KOFF))
    e("v_and_b32 v%d, 48, v%d" % (V_BP, V_LANE))
    e("v_lshl_add_u32 v%d, v%d, 2, v%d" % (V_BP, V_T + 2, V_BP))
    e("v_add_u32 v%d, v%d, v%d" % (V_BP, V_BP, V_T))
    e("v_lshlrev_b32 v%d, 2, v%d" % (V_BP, V_BP))
    e("v_and_b32 v%d, 1, v%d" % (V_T + 3, V_LANE))
    e("v_lshlrev_b32 v%d, 4, v%d" % (V_T + 3, V_T + 3))
    e("v_mov_b32 v%d, 0xffff" % (V_T + 4))
    e("v_lshlrev_b32 v%d, v%d, v%d" % (V_T + 4, V_T + 3, V_T + 4))
    e("v_and_b32 v%d, 2, v%d" % (V_T + 3, V_LANE))
    e("v_cmp_eq_u32 vcc, 0, v%d" % (V_T + 3))
    e("v_mov_b32 v%d, 0" % (V_T + 5))
    e("s_nop 1")
    e("v_cndmask_b32 v%d, v%d, v%d, vcc" % (V_M0, V_T + 5, V_T + 4))
    e("v_cndmask_b32 v%d, v%d, v%d, vcc" % (V_M1, V_T + 4, V_T + 5))
    g.stamp()

    e("v_mov_b32 v%d, -1" % (V_U))
    e("v_mov_b32 v%d, -1" % (V_U + 1))
    e("v_mov_b32 v%d, -1" % (V_U + 2))
    e("v_mov_b32 v%d, -1" % (V_U + 3))
    e("v_lshlrev_b32 v%d, 4, v0" % (V_U + 4))
    e("s_lshl_b32 s%d, s2, 13" % S_T0)
    g.vmem("buffer_store_dwordx4 %s, v%d, %s, s%d offen sc1" % (vr(V_U, 4), V_U + 4, srd(S_WS), S_T0))
    e("s_add_u32 s%d, s%d, 4096" % (S_T0, S_T0))
    g.vmem("buffer_store_dwordx4 %s, v%d, %s, s%d offen sc1" % (vr(V_U, 4), V_U + 4, srd(S_WS), S_T0))

    def load_wq(dst, taddr):
        e("v_lshrrev_b32 v%d, 1, v%d" % (taddr, V_LANE))
        e("v_lshlrev_b32 v%d, 15, v%d" % (taddr, taddr))
        e("v_and_b32 v%d, 1, v%d" % (taddr + 1, V_LANE))
        e("v_lshl_add_u32 v%d, v%d, 4, v%d" % (taddr, taddr + 1, taddr))
        e("s_lshl_b32 s%d, s%d, 20" % (S_T0, S_WAVE))
        e("s_lshl_b32 s%d, s%d, 10" % (S_T1, S_KVH))
        e("s_add_u32 s%d, s%d, s%d" % (S_T0, S_T0, S_T1))
        e("s_lshl_b32 s%d, s%d, 5" % (S_T1, S_C))
        e("s_add_u32 s%d, s%d, s%d" % (S_T0, S_T0, S_T1))
        seq = None
        for i in range(4):
            seq = g.vmem("buffer_load_dwordx4 %s, v%d, %s, s%d offen %s" % (vr(dst + 4 * i, 4), taddr, srd(S_WQ), S_T0, cfg.FW))
            if i < 3:
                e("s_add_u32 s%d, s%d, 8192" % (S_T0, S_T0))
        return seq

    def load_wo(dst, taddr):
        e("v_lshrrev_b32 v%d, 1, v%d" % (taddr, V_LANE))
        e("v_lshlrev_b32 v%d, 12, v%d" % (taddr, taddr))
        e("v_and_b32 v%d, 1, v%d" % (taddr + 1, V_LANE))
        e("v_lshl_add_u32 v%d, v%d, 4, v%d" % (taddr, taddr + 1, taddr))
        e("s_lshl_b32 s%d, s%d, 17" % (S_T0, S_WAVE))
        e("s_lshl_b32 s%d, s%d, 19" % (S_T1, S_KVH))
        e("s_add_u32 s%d, s%d, s%d" % (S_T0, S_T0, S_T1))
        e("s_lshl_b32 s%d, s%d, 5" % (S_T1, S_C))
        e("s_add_u32 s%d, s%d, s%d" % (S_T0, S_T0, S_T1))
        seq = None
        for i in range(4):
            seq = g.vmem("buffer_load_dwordx4 %s, v%d, %s, s%d offen offset:%d %s" % (vr(dst + 4 * i, 4), taddr, srd(S_WO), S_T0, 1024 * i, cfg.FW))
        return seq

    def load_w13(dst, taddr):
        e("v_mul_u32_u24 v%d, 7168, v%d" % (taddr, V_LANE))
        e("s_mul_i32 s%d, s%d, %d" % (S_T0, S_WAVE, 128 * 3584))
        e("s_lshl_b32 s%d, s%d, 4" % (S_T1, S_CB))
        e("s_add_u32 s%d, s%d, s%d" % (S_T0, S_T0, S_T1))
        seq = None
        for m, sr in enumerate((S_W1, S_W3)):
            for i in range(2):
                seq = g.vmem("buffer_load_dwordx4 %s, v%d, %s, s%d offen offset:%d %s" % (vr(dst + 8 * m + 4 * i, 4), taddr, srd(sr), S_T0, 3584 * i, cfg.FW))
        return seq

    def load_w2(dst, taddr):
        e("v_lshrrev_b32 v%d, 1, v%d" % (taddr, V_LANE))
        e("v_lshlrev_b32 v%d, 11, v%d" % (taddr, taddr))
        e("v_and_b32 v%d, 1, v%d" % (taddr + 1, V_LANE))
        e("v_lshl_add_u32 v%d, v%d, 4, v%d" % (taddr, taddr + 1, taddr))
        e("s_lshl_b32 s%d, s%d, 16" % (S_T0, S_WAVE))
        e("s_lshl_b32 s%d, s%d, 18" % (S_T1, S_KS))
        e("s_add_u32 s%d, s%d, s%d" % (S_T0, S_T0, S_T1))
        e("s_lshl_b32 s%d, s%d, 5" % (S_T1, S_CN))
        e("s_add_u32 s%d, s%d, s%d" % (S_T0, S_T0, S_T1))
        seq = None
        for i in range(2):
            seq = g.vmem("buffer_load_dwordx4 %s, v%d, %s, s%d offen offset:%d %s" % (vr(dst + 4 * i, 4), taddr, srd(S_W2), S_T0, 1024 * i, cfg.FW))
        return seq

    class Stream:
        def __init__(self):
            self.cur_soff = None

        def load(self, which, idx, tile, flags):
            base = (idx >> 2) * 4096
            if self.cur_soff != base:
                e("s_mov_b32 s%d, 0x%x" % (S_SOFF, base))
                self.cur_soff = base
            sr, vo = (S_K, V_KOFF) if which == "K" else (S_V, V_VOFF)
            return g.vmem("buffer_load_dwordx4 %s, v%d, %s, s%d offen offset:%d %s" % (tile.r(), vo, srd(sr), S_SOFF, (idx & 3) * 1024, flags))

    st = Stream()

    def x_to_lds_and_barrier():
        e("v_lshlrev_b32 v%d, 3, v0" % V_T)
        e("ds_write_b64 v%d, %s offset:%d" % (V_T, vr(V_XR, 2), L_XL))
        g.lgkm0()
        e("s_barrier")

    def q_stage_compute(wregs):
        xs = V_Y
        mine = V_Y + 8
        acc = V_Y + 12
        t = V_Y + 20
        e("v_lshlrev_b32 v%d, 5, v%d" % (V_T, V_LANE))
        e("ds_read_b128 %s, v%d offset:%d" % (vr(xs, 4), V_T, L_XL))
        e("ds_read_b128 %s, v%d offset:%d" % (vr(xs + 4, 4), V_T, L_XL + 16))
        e("v_mov_b32 v%d, 0" % (V_T + 1))
        e("ds_read_b32 v%d, v%d offset:%d" % (t + 5, V_T + 1, L_XL))
        e("v_lshrrev_b32 v%d, 1, v%d" % (V_T + 1, V_LANE))
        e("v_lshlrev_b32 v%d, 4, v%d" % (V_T + 1, V_T + 1))
        e("s_lshl_b32 s%d, s%d, 9" % (S_T0, S_WAVE))
        e("v_add_u32 v%d, s%d, v%d" % (V_T + 1, S_T0, V_T + 1))
        e("ds_read_b128 %s, v%d offset:%d" % (vr(mine, 4), V_T + 1, L_XL))
        g.lgkm0()
        g.layernorm(xs, mine, 4, t)
        g.gemv8([wregs + 4 * i for i in range(4)], [mine + i for i in range(4)], acc, V_T, V_T + 1)
        g.reduce8_to_lds(acc, V_T, L_RED)
        g.sum4_pairs(V_U, V_Y, V_T, L_RED)

    def q_publish(it):
        lab = g.newlabel("qpub")
        e("s_cmp_lg_u32 s%d, 0" % S_WAVE)
        e("s_cbranch_scc1 %s" % lab)
        e("v_cvt_pk_bf16_f32 v%d, v%d, v%d" % (V_U + 2, V_U, V_U + 1))
        e("v_min_u32 v%d, -2, v%d" % (V_U + 2, V_U + 2))
        e("v_lshlrev_b32 v%d, 2, v%d" % (V_U + 3, V_LANE))
        e("s_lshl_b32 s%d, s%d, 10" % (S_T0, S_KVH))
        e("s_lshl_b32 s%d, s%d, 5" % (S_T1, S_C))
        e("s_add_u32 s%d, s%d, s%d" % (S_T0, S_T0, S_T1))
        e("s_add_u32 s%d, s%d, 0x%x" % (S_T0, S_T0, it * ITS + QB))
        g.exec_lanes(8)
        g.vmem("buffer_store_dword v%d, v%d, %s, s%d offen sc1" % (V_U + 2, V_U + 3, srd(S_WS), S_T0), counted=False)
        g.exec_all()
        g.label(lab)

    def q_gather_addr(it):
        e("v_and_b32 v%d, 3, v%d" % (V_T + 4, V_LANE))
        e("v_lshlrev_b32 v%d, 8, v%d" % (V_T + 4, V_T + 4))
        e("v_lshrrev_b32 v%d, 2, v%d" % (V_T + 5, V_LANE))
        e("v_lshl_add_u32 v%d, v%d, 4, v%d" % (V_T + 4, V_T + 5, V_T + 4))
        e("s_lshl_b32 s%d, s%d, 10" % (S_R0, S_KVH))
        e("s_add_u32 s%d, s%d, 0x%x" % (S_R0, S_R0, it * ITS + QB))

    def q_gather_issue(counted):
        return g.vmem("buffer_load_dwordx4 %s, v%d, %s, s%d offen sc1" % (vr(V_Q, 4), V_T + 4, srd(S_WS), S_R0), counted=counted)

    def qk_mfma(t, tile):
        d = V_D + 4 * (t & 3)
        e("v_mfma_f32_16x16x32_bf16 %s, %s, %s, 0" % (vr(d, 4), tile.r(), vr(V_Q, 4)))

    def qk_adds(t):
        d = V_D + 4 * (t & 3)
        G_, c4 = t >> 2, t & 3
        y = V_Y + G_
        first = True
        for q in range(4):
            if q == c4:
                continue
            n = 4 * ((c4 - q) & 3)
            src1 = d + c4 if first else y
            e("v_add_f32_dpp v%d, v%d, v%d row_ror:%d row_mask:0xf bank_mask:0x%x" % (y, d + q, src1, n, 1 << c4))
            first = False

    def softmax():
        m, l, t = V_T, V_T + 1, V_T + 2
        e("v_max3_f32 v%d, v%d, v%d, v%d" % (m, V_Y, V_Y + 1, V_Y + 2))
        for i in range(3, 31, 2):
            e("v_max3_f32 v%d, v%d, v%d, v%d" % (m, m, V_Y + i, V_Y + i + 1))
        e("v_max_f32 v%d, v%d, v%d" % (m, m, V_Y + 31))
        g.ror_red([m], [8, 4], "v_max_f32")
        g.allred_rows(m, t, "v_max_f32")
        e("s_mov_b32 s%d, 0x%x" % (S_T0, f32bits(SCALE)))
        e("v_mul_f32 v%d, s%d, v%d" % (t, S_T0, m))
        e("v_mov_b32 v%d, 0" % l)
        for i in range(32):
            e("v_fma_f32 v%d, v%d, s%d, -v%d" % (V_Y + i, V_Y + i, S_T0, t))
        for i in range(32):
            e("v_exp_f32 v%d, v%d" % (V_Y + i, V_Y + i))
        for i in range(32):
            e("v_add_f32 v%d, v%d, v%d" % (l, l, V_Y + i))
            e("v_cvt_pk_bf16_f32 v%d, v%d, v%d" % (V_Y + i, V_Y + i, V_Y + i))
        for i in range(32):
            e("ds_bpermute_b32 v%d, v%d, v%d" % (V_Y + i, V_BP, V_Y + i))
            if i % 8 == 7:
                g.lgkm0()
        g.ror_red([l], [8, 4], "v_add_f32")
        g.allred_rows(l, t, "v_add_f32")
        e("v_and_b32 v%d, 3, v%d" % (t, V_LANE))
        e("v_lshlrev_b32 v%d, 3, v%d" % (t, t))
        e("s_lshl_b32 s%d, s%d, 5" % (S_T0, S_WAVE))
        e("v_add_u32 v%d, s%d, v%d" % (t, S_T0, t))
        e("ds_write_b64 v%d, %s offset:%d" % (t, vr(m, 2), L_ML))
        for i in range(8):
            e("v_mov_b32 v%d, 0" % (V_O + i))
        g.lgkm0()

    def pv_b(u, slot):
        G_, c4 = u >> 2, u & 3
        b = V_B + 2 * slot
        qp = "quad_perm:[%d,%d,%d,%d] row_mask:0xf bank_mask:0xf" % (c4, c4, c4, c4)
        e("v_and_b32_dpp v%d, v%d, v%d %s" % (b, V_Y + G_, V_M0, qp))
        e("v_and_b32_dpp v%d, v%d, v%d %s" % (b + 1, V_Y + G_, V_M1, qp))

    def pv_mfma(tile, slot):
        b = V_B + 2 * slot
        e("v_mfma_f32_16x16x16_bf16 %s, %s, %s, %s" % (vr(V_O, 4), tile.r(0, 2), vr(b, 2), vr(V_O, 4)))
        e("v_mfma_f32_16x16x16_bf16 %s, %s, %s, %s" % (vr(V_O + 4, 4), tile.r(2, 2), vr(b, 2), vr(V_O + 4, 4)))

    e("v_lshlrev_b32 v%d, 2, v0" % (V_U + 5))
    xseq = g.vmem("buffer_load_dword v%d, v%d, %s, 0 offen" % (V_XR, V_U + 5, srd(S_X)))
    wqseq = load_wq(V_D, V_T)

    loads = [("K", t) for t in range(128)] + [("V", u) for u in range(128)]
    dest = {}
    ring_user = {}
    state = {"issued": 0, "consumed": 0}
    seqs = {}
    ring_free = [True] * NVR
    ring_next = [0]

    def can_issue(i):
        which, idx = loads[i]
        if which == "K" and idx < NKR:
            return khome[idx], None
        s = ring_next[0] % NVR
        if not ring_free[s]:
            return None, None
        return ring[s], s

    def issue_upto(depth):
        while state["issued"] < len(loads) and state["issued"] - state["consumed"] < depth:
            i = state["issued"]
            tile, s = can_issue(i)
            if tile is None:
                break
            which, idx = loads[i]
            seqs[i] = st.load(which, idx, tile, cfg.FK1 if which == "K" else cfg.FV1)
            dest[i] = (tile, s)
            if s is not None:
                ring_free[s] = False
                ring_next[0] += 1
            state["issued"] += 1

    def consumed(i):
        tile, s = dest[i]
        if s is not None:
            ring_free[s] = True
        state["consumed"] = i + 1

    issue_upto(20)
    g.wait_vm(wqseq)
    e("v_and_b32 v%d, 0xffff0000, v%d" % (V_XR + 1, V_XR))
    e("v_lshlrev_b32 v%d, 16, v%d" % (V_XR, V_XR))
    x_to_lds_and_barrier()
    lab = g.newlabel("arr")
    e("s_cmp_lg_u32 s%d, 0" % S_WAVE)
    e("s_cbranch_scc1 %s" % lab)
    e("v_mov_b32 v%d, 1" % (V_U))
    e("v_mov_b32 v%d, 0" % (V_U + 1))
    e("s_lshl_b32 s%d, s%d, 5" % (S_T0, S_KVH))
    g.exec_lanes(1)
    g.vmem("buffer_atomic_add v%d, v%d, %s, s%d offen sc1" % (V_U, V_U + 1, srd(S_DBG), S_T0), counted=False)
    g.exec_all()
    g.label(lab)
    q_stage_compute(V_D)
    e("v_lshlrev_b32 v%d, 2, v%d" % (V_T + 4, V_LANE))
    e("v_and_b32 v%d, 7, v%d" % (V_T + 5, V_LANE))
    e("v_cmp_eq_u32 vcc, 0, v%d" % (V_T + 5))
    e("s_mov_b64 s[%d:%d], vcc" % (S_EX, S_EX + 1))

    def clr_issue(counted):
        return g.vmem("buffer_load_dword v%d, v%d, %s, 0 offen sc1" % (V_T + 3, V_T + 4, srd(S_DBG)), counted=counted)

    def clr_check():
        e("v_cmp_gt_u32 vcc, 32, v%d" % (V_T + 3))
        e("s_and_b64 vcc, vcc, s[%d:%d]" % (S_EX, S_EX + 1))

    lab = g.newlabel("clr")
    seq = clr_issue(True)
    issue_upto(40)
    g.wait_vm(seq)
    clr_check()
    e("s_cbranch_vccz %s_ok" % lab)
    g.label(lab)
    e("s_sleep 2")
    clr_issue(False)
    e("s_waitcnt vmcnt(0)")
    clr_check()
    e("s_cbranch_vccz %s_ok" % lab)
    e("s_sub_u32 s%d, s%d, 1" % (S_SPIN, S_SPIN))
    e("s_cmp_gt_i32 s%d, 0" % S_SPIN)
    e("s_cbranch_scc1 %s" % lab)
    g.label(lab + "_ok")
    q_publish(0)
    q_gather_addr(0)
    g.poll(q_gather_issue, [V_Q + i for i in range(4)], V_T, "q0", counted_after=lambda: issue_upto(58))
    g.stamp()

    vres = {}

    def attention_tail_and_chain(it):
        base = it * ITS
        g.nop(10)
        e("v_bfe_u32 v%d, v%d, 2, 2" % (V_T, V_LANE))
        e("v_lshlrev_b32 v%d, 9, v%d" % (V_T, V_T))
        e("v_lshrrev_b32 v%d, 4, v%d" % (V_T + 1, V_LANE))
        e("v_lshl_add_u32 v%d, v%d, 7, v%d" % (V_T, V_T + 1, V_T))
        e("v_and_b32 v%d, 3, v%d" % (V_T + 1, V_LANE))
        e("v_lshl_add_u32 v%d, v%d, 2, v%d" % (V_T, V_T + 1, V_T))
        e("s_lshl_b32 s%d, s%d, 11" % (S_T0, S_WAVE))
        e("v_add_u32 v%d, s%d, v%d" % (V_T, S_T0, V_T))
        for half in range(2):
            for r in range(4):
                e("ds_write_b32 v%d, v%d offset:%d" % (V_T, V_O + 4 * half + r, L_OW + 32 * r + 16 * half))
        w13seq = load_w13(V_Y, V_T + 2)
        w2seq = load_w2(V_Y + 16, V_T + 2)
        g.lgkm0()
        e("s_barrier")
        e("v_lshrrev_b32 v%d, 6, v0" % V_T)
        e("v_lshlrev_b32 v%d, 3, v%d" % (V_T + 1, V_T))
        e("v_lshlrev_b32 v%d, 3, v0" % (V_T + 2))
        ow, ml = V_Y + 24, V_U
        for w in range(4):
            e("ds_read_b64 %s, v%d offset:%d" % (vr(ml + 2 * w, 2), V_T + 1, L_ML + 32 * w))
        for w in range(4):
            e("ds_read_b64 %s, v%d offset:%d" % (vr(ow + 2 * w, 2), V_T + 2, L_OW + 2048 * w))
        g.lgkm0()
        M, Lr = V_O, V_O + 1
        e("v_max3_f32 v%d, v%d, v%d, v%d" % (M, ml, ml + 2, ml + 4))
        e("v_max_f32 v%d, v%d, v%d" % (M, M, ml + 6))
        e("s_mov_b32 s%d, 0x%x" % (S_T0, f32bits(SCALE)))
        for w in range(4):
            e("v_sub_f32 v%d, v%d, v%d" % (ml + 2 * w, ml + 2 * w, M))
            e("v_mul_f32 v%d, s%d, v%d" % (ml + 2 * w, S_T0, ml + 2 * w))
        for w in range(4):
            e("v_exp_f32 v%d, v%d" % (ml + 2 * w, ml + 2 * w))
        g.nop(1)
        e("v_mul_f32 v%d, v%d, v%d" % (Lr, ml, ml + 1))
        e("v_mul_f32 v%d, v%d, v%d" % (V_O + 2, ml, ow))
        e("v_mul_f32 v%d, v%d, v%d" % (V_O + 3, ml, ow + 1))
        for w in range(1, 4):
            e("v_fmac_f32 v%d, v%d, v%d" % (Lr, ml + 2 * w, ml + 2 * w + 1))
            e("v_fmac_f32 v%d, v%d, v%d" % (V_O + 2, ml + 2 * w, ow + 2 * w))
            e("v_fmac_f32 v%d, v%d, v%d" % (V_O + 3, ml + 2 * w, ow + 2 * w + 1))
        for k in range(4):
            e("v_min_u32 v%d, -2, v%d" % (V_O + k, V_O + k))
        e("v_lshrrev_b32 v%d, 3, v0" % V_T)
        e("v_mul_u32_u24 v%d, 2560, v%d" % (V_T, V_T))
        e("v_and_b32 v%d, 7, v0" % (V_T + 1))
        e("v_lshl_add_u32 v%d, v%d, 3, v%d" % (V_T + 1, V_T + 1, V_T))
        e("s_mul_i32 s%d, s%d, %d" % (S_T0, S_KVH, 32 * 2560))
        e("s_mul_i32 s%d, s%d, 80" % (S_T1, S_C))
        e("s_add_u32 s%d, s%d, s%d" % (S_T0, S_T0, S_T1))
        e("s_add_u32 s%d, s%d, 0x%x" % (S_T0, S_T0, base + REC))
        g.vmem("buffer_store_dwordx2 %s, v%d, %s, s%d offen sc1" % (vr(V_O + 2, 2), V_T + 1, srd(S_WS), S_T0))
        g.vmem("buffer_store_dwordx2 %s, v%d, %s, s%d offen offset:64 sc1" % (vr(V_O, 2), V_T, srd(S_WS), S_T0))
        g.stamp()

        skip = g.newlabel("a1skip")
        e("s_cmp_lg_u32 s%d, 0" % S_WAVE)
        e("s_cbranch_scc1 %s" % skip)
        o0, o1, m0, m1 = V_Y + 24, V_Y + 28, V_U, V_U + 2
        e("v_lshrrev_b32 v%d, 2, v%d" % (V_T, V_LANE))
        e("v_mul_u32_u24 v%d, 80, v%d" % (V_T, V_T))
        e("v_and_b32 v%d, 3, v%d" % (V_T + 1, V_LANE))
        e("v_lshl_add_u32 v%d, v%d, 4, v%d" % (V_T + 1, V_T + 1, V_T))
        e("s_lshl_b32 s%d, s%d, 5" % (S_R0, S_KVH))
        e("s_add_u32 s%d, s%d, s%d" % (S_R0, S_R0, S_C))
        e("s_mul_i32 s%d, s%d, 2560" % (S_R0, S_R0))
        e("s_add_u32 s%d, s%d, 0x%x" % (S_R0, S_R0, base + REC))

        def a1_issue(counted):
            g.vmem("buffer_load_dwordx4 %s, v%d, %s, s%d offen sc1" % (vr(o0, 4), V_T + 1, srd(S_WS), S_R0), counted=False)
            g.vmem("buffer_load_dwordx4 %s, v%d, %s, s%d offen offset:1280 sc1" % (vr(o1, 4), V_T + 1, srd(S_WS), S_R0), counted=False)
            g.vmem("buffer_load_dwordx2 %s, v%d, %s, s%d offen offset:64 sc1" % (vr(m0, 2), V_T, srd(S_WS), S_R0), counted=False)
            g.vmem("buffer_load_dwordx2 %s, v%d, %s, s%d offen offset:1344 sc1" % (vr(m1, 2), V_T, srd(S_WS), S_R0), counted=False)
        save_done = g.vm_done
        g.poll(a1_issue, [o0 + i for i in range(8)] + [m0, m0 + 1, m1, m1 + 1], V_T + 2, "a1")
        M, t = V_O, V_O + 1
        e("v_max_f32 v%d, v%d, v%d" % (M, m0, m1))
        g.ror_red([M], [8, 4], "v_max_f32")
        g.allred_rows(M, t, "v_max_f32")
        e("s_mov_b32 s%d, 0x%x" % (S_T0, f32bits(SCALE)))
        for mm in (m0, m1):
            e("v_sub_f32 v%d, v%d, v%d" % (mm, mm, M))
            e("v_mul_f32 v%d, s%d, v%d" % (mm, S_T0, mm))
        for mm in (m0, m1):
            e("v_exp_f32 v%d, v%d" % (mm, mm))
        g.nop(1)
        Lr = V_O + 2
        e("v_mul_f32 v%d, v%d, v%d" % (Lr, m0, m0 + 1))
        e("v_fmac_f32 v%d, v%d, v%d" % (Lr, m1, m1 + 1))
        for k in range(4):
            e("v_mul_f32 v%d, v%d, v%d" % (o0 + k, m0, o0 + k))
            e("v_fmac_f32 v%d, v%d, v%d" % (o0 + k, m1, o1 + k))
        g.ror_red([Lr, o0, o0 + 1, o0 + 2, o0 + 3], [8, 4], "v_add_f32")
        for x in [Lr, o0, o0 + 1, o0 + 2, o0 + 3]:
            g.allred_rows(x, t, "v_add_f32")
        e("v_rcp_f32 v%d, v%d" % (Lr, Lr))
        g.nop(1)
        for k in range(4):
            e("v_mul_f32 v%d, v%d, v%d" % (o0 + k, o0 + k, Lr))
            g.bf16r(o0 + k, t)
            e("v_min_u32 v%d, -2, v%d" % (o0 + k, o0 + k))
        e("v_lshlrev_b32 v%d, 4, v%d" % (V_T, V_LANE))
        e("s_lshl_b32 s%d, s%d, 11" % (S_T0, S_KVH))
        e("s_lshl_b32 s%d, s%d, 6" % (S_T1, S_C))
        e("s_add_u32 s%d, s%d, s%d" % (S_T0, S_T0, S_T1))
        e("s_add_u32 s%d, s%d, 0x%x" % (S_T0, S_T0, base + OB))
        g.exec_lanes(4)
        g.vmem("buffer_store_dwordx4 %s, v%d, %s, s%d offen sc1" % (vr(o0, 4), V_T, srd(S_WS), S_T0), counted=False)
        g.exec_all()
        g.label(skip)
        g.vm_done = save_done
        g.stamp()

        og = V_Y + 24
        acc = V_O
        e("v_lshrrev_b32 v%d, 1, v%d" % (V_T + 4, V_LANE))
        e("v_lshlrev_b32 v%d, 4, v%d" % (V_T + 4, V_T + 4))
        e("s_lshl_b32 s%d, s%d, 11" % (S_R0, S_KVH))
        e("s_lshl_b32 s%d, s%d, 9" % (S_T1, S_WAVE))
        e("s_add_u32 s%d, s%d, s%d" % (S_R0, S_R0, S_T1))
        e("s_add_u32 s%d, s%d, 0x%x" % (S_R0, S_R0, base + OB))
        g.poll(lambda cnt: g.vmem("buffer_load_dwordx4 %s, v%d, %s, s%d offen sc1" % (vr(og, 4), V_T + 4, srd(S_WS), S_R0), counted=False),
               [og + i for i in range(4)], V_T, "ob")
        g.gemv8([V_D + 4 * i for i in range(4)], [og + i for i in range(4)], acc, V_T, V_T + 1)
        if it == 0:
            nonlocal_wq[0] = load_wq(V_D, V_T + 2)
        g.reduce8_to_lds(acc, V_T, L_RED + 256)
        lab = g.newlabel("p1pub")
        e("s_cmp_lg_u32 s%d, 0" % S_WAVE)
        e("s_cbranch_scc1 %s" % lab)
        g.sum4_pairs(V_U, V_O, V_T, L_RED + 256)
        e("v_min_u32 v%d, -2, v%d" % (V_U, V_U))
        e("v_min_u32 v%d, -2, v%d" % (V_U + 1, V_U + 1))
        e("v_lshlrev_b32 v%d, 3, v%d" % (V_T, V_LANE))
        e("s_lshl_b32 s%d, s%d, 11" % (S_T0, S_KVH))
        e("s_lshl_b32 s%d, s%d, 6" % (S_T1, S_C))
        e("s_add_u32 s%d, s%d, s%d" % (S_T0, S_T0, S_T1))
        e("s_add_u32 s%d, s%d, 0x%x" % (S_T0, S_T0, base + P1))
        g.exec_lanes(8)
        g.vmem("buffer_store_dwordx2 %s, v%d, %s, s%d offen sc1" % (vr(V_U, 2), V_T, srd(S_WS), S_T0), counted=False)
        g.exec_all()
        g.label(lab)
        g.stamp()

        x_gather(base + P1, 8)
        x_to_lds_and_barrier()
        g.stamp()

        skip = g.newlabel("ffnskip")
        e("s_cmp_ge_u32 s%d, 28" % S_C)
        e("s_cbranch_scc1 %s" % skip)
        xs, mine, t = V_O, V_B, V_U
        accg, accu = V_Y + 24, V_O
        e("v_lshlrev_b32 v%d, 5, v%d" % (V_T, V_LANE))
        e("ds_read_b128 %s, v%d offset:%d" % (vr(xs, 4), V_T, L_XL))
        e("ds_read_b128 %s, v%d offset:%d" % (vr(xs + 4, 4), V_T, L_XL + 16))
        e("v_mov_b32 v%d, 0" % (V_T + 1))
        e("ds_read_b32 v%d, v%d offset:%d" % (t + 5, V_T + 1, L_XL))
        e("v_lshlrev_b32 v%d, 3, v0" % (V_T + 1))
        e("ds_read_b64 %s, v%d offset:%d" % (vr(mine, 2), V_T + 1, L_XL))
        g.lgkm0()
        g.layernorm(xs, mine, 2, t)
        g.gemv8([V_Y, V_Y + 4], [mine, mine + 1], accg, V_T, V_T + 1)
        g.gemv8([V_Y + 8, V_Y + 12], [mine, mine + 1], accu, V_T, V_T + 1)
        g.nop(2)
        for j in range(8):
            e("v_permlane32_swap_b32 v%d, v%d" % (accg + j, accu + j))
        g.nop(1)
        for j in range(8):
            e("v_add_f32 v%d, v%d, v%d" % (accg + j, accg + j, accu + j))
        g.nop(2)
        for j in range(4):
            e("v_permlane16_swap_b32 v%d, v%d" % (accg + j, accg + j + 4))
        g.nop(1)
        for j in range(4):
            e("v_add_f32 v%d, v%d, v%d" % (accg + j, accg + j, accg + j + 4))
        g.ror_red([accg + j for j in range(4)], [8, 4, 2, 1], "v_add_f32")
        e("v_lshrrev_b32 v%d, 4, v0" % V_T)
        e("v_lshlrev_b32 v%d, 4, v%d" % (V_T, V_T))
        e("ds_write_b128 v%d, %s offset:%d" % (V_T, vr(accg, 4), L_RED + 512))
        g.lgkm0()
        e("s_barrier")
        lab = g.newlabel("hpub")
        e("s_cmp_lg_u32 s%d, 0" % S_WAVE)
        e("s_cbranch_scc1 %s" % lab)
        e("v_and_b32 v%d, 7, v%d" % (V_T, V_LANE))
        e("v_lshlrev_b32 v%d, 2, v%d" % (V_T, V_T))
        for w in range(4):
            e("ds_read_b32 v%d, v%d offset:%d" % (V_O + 2 * w, V_T, L_RED + 512 + 64 * w))
            e("ds_read_b32 v%d, v%d offset:%d" % (V_O + 2 * w + 1, V_T, L_RED + 512 + 64 * w + 32))
        g.lgkm0()
        for k in range(2):
            e("v_add_f32 v%d, v%d, v%d" % (V_O + k, V_O + k, V_O + 2 + k))
            e("v_add_f32 v%d, v%d, v%d" % (V_O + 4 + k, V_O + 4 + k, V_O + 6 + k))
        gt, up, tt = V_U, V_U + 1, V_U + 2
        e("v_add_f32 v%d, v%d, v%d" % (gt, V_O, V_O + 4))
        e("v_add_f32 v%d, v%d, v%d" % (up, V_O + 1, V_O + 5))
        g.bf16r(gt, tt)
        g.bf16r(up, tt)
        e("v_mul_f32 v%d, 0x%x, v%d" % (tt, f32bits(-LOG2E), gt))
        e("v_exp_f32 v%d, v%d" % (tt, tt))
        g.nop(1)
        e("v_add_f32 v%d, 1.0, v%d" % (tt, tt))
        e("v_rcp_f32 v%d, v%d" % (tt, tt))
        g.nop(1)
        e("v_mul_f32 v%d, v%d, v%d" % (gt, gt, tt))
        g.bf16r(gt, tt)
        e("v_mul_f32 v%d, v%d, v%d" % (gt, gt, up))
        g.bf16r(gt, tt)
        e("v_min_u32 v%d, -2, v%d" % (gt, gt))
        e("s_lshl_b32 s%d, s%d, 5" % (S_T0, S_CB))
        e("s_add_u32 s%d, s%d, 0x%x" % (S_T0, S_T0, base + HB))
        g.exec_lanes(8)
        g.vmem("buffer_store_dword v%d, v%d, %s, s%d offen sc1" % (gt, V_T, srd(S_WS), S_T0), counted=False)
        g.exec_all()
        g.label(lab)
        g.label(skip)
        g.stamp()

        skip = g.newlabel("w2skip")
        e("s_cmp_ge_u32 s%d, 7" % S_KS)
        e("s_cbranch_scc1 %s" % skip)
        hg, acc = V_B, V_O
        e("v_lshrrev_b32 v%d, 1, v%d" % (V_T + 4, V_LANE))
        e("v_lshlrev_b32 v%d, 3, v%d" % (V_T + 4, V_T + 4))
        e("s_lshl_b32 s%d, s%d, 10" % (S_R0, S_KS))
        e("s_lshl_b32 s%d, s%d, 8" % (S_T1, S_WAVE))
        e("s_add_u32 s%d, s%d, s%d" % (S_R0, S_R0, S_T1))
        e("s_add_u32 s%d, s%d, 0x%x" % (S_R0, S_R0, base + HB))
        save_done = g.vm_done
        g.poll(lambda cnt: g.vmem("buffer_load_dwordx2 %s, v%d, %s, s%d offen sc1" % (vr(hg, 2), V_T + 4, srd(S_WS), S_R0), counted=False),
               [hg, hg + 1], V_T, "hb")
        g.gemv8([V_Y + 16, V_Y + 20], [hg, hg + 1], acc, V_T, V_T + 1)
        g.reduce8_to_lds(acc, V_T, L_RED + 768)
        lab = g.newlabel("p2pub")
        e("s_cmp_lg_u32 s%d, 0" % S_WAVE)
        e("s_cbranch_scc1 %s" % lab)
        g.sum4_pairs(V_U, V_O, V_T, L_RED + 768)
        e("v_min_u32 v%d, -2, v%d" % (V_U, V_U))
        e("v_min_u32 v%d, -2, v%d" % (V_U + 1, V_U + 1))
        e("v_lshlrev_b32 v%d, 3, v%d" % (V_T, V_LANE))
        e("s_lshl_b32 s%d, s%d, 11" % (S_T0, S_KS))
        e("s_lshl_b32 s%d, s%d, 6" % (S_T1, S_CN))
        e("s_add_u32 s%d, s%d, s%d" % (S_T0, S_T0, S_T1))
        e("s_add_u32 s%d, s%d, 0x%x" % (S_T0, S_T0, base + P2))
        g.exec_lanes(8)
        g.vmem("buffer_store_dwordx2 %s, v%d, %s, s%d offen sc1" % (vr(V_U, 2), V_T, srd(S_WS), S_T0), counted=False)
        g.exec_all()
        g.label(lab)
        g.label(skip)
        g.vm_done = save_done
        g.stamp()

    nonlocal_wq = [None]

    def x_gather(off, n):
        pr = V_O
        regs = [V_O + 2 * k for k in range(4)] + [V_U + 2 * k for k in range(4)]
        e("v_lshlrev_b32 v%d, 3, v0" % (V_T + 4))

        def issue(cnt):
            for k in range(n):
                if k % 2 == 0:
                    e("s_mov_b32 s%d, 0x%x" % (S_R0, off + 2048 * k))
                g.vmem("buffer_load_dwordx2 %s, v%d, %s, s%d offen offset:%d sc1" % (vr(regs[k], 2), V_T + 4, srd(S_WS), S_R0, 2048 * (k & 1)), counted=False)
        allr = []
        for k in range(n):
            allr += [regs[k], regs[k] + 1]
        g.poll(issue, allr, V_T, "xg")
        for j in range(2):
            live = [regs[k] + j for k in range(n)]
            while len(live) > 1:
                nxt = []
                for a in range(0, len(live) - 1, 2):
                    e("v_add_f32 v%d, v%d, v%d" % (live[a], live[a], live[a + 1]))
                    nxt.append(live[a])
                if len(live) % 2:
                    nxt.append(live[-1])
                live = nxt
            g.bf16r(live[0], V_T)
            e("v_add_f32 v%d, v%d, v%d" % (V_XR + j, V_XR + j, live[0]))
            g.bf16r(V_XR + j, V_T)

    LAG = 2
    for t in range(128 + LAG):
        if t < 128:
            i = t
            issue_upto(cfg.DEPTH1)
            g.wait_vm(seqs[i])
            tile, s = dest[i]
            qk_mfma(t, tile)
            if cfg.RESIDENT and t >= NKR:
                e("ds_write_b128 v%d, %s offset:%d" % (V_LT, tile.r(), (t - NKR) * 1024))
            consumed(i)
            issue_upto(cfg.DEPTH1)
        else:
            g.nop(4)
        if t - LAG >= 0:
            qk_adds(t - LAG)
        else:
            g.nop(3)
    g.stamp()
    woseq = load_wo(V_D, V_T + 3)
    softmax()
    g.stamp()
    pv_b(0, 0)
    for u in range(128):
        i = 128 + u
        if u + 1 < 128:
            pv_b(u + 1, (u + 1) & 1)
        else:
            g.nop(2)
        g.wait_vm(seqs[i])
        tile, s = dest[i]
        pv_mfma(tile, u & 1)
        consumed(i)
        issue_upto(cfg.DEPTH1)
        vres[u] = tile
    g.stamp()
    attention_tail_and_chain(0)

    x_gather(P2, 7)
    x_to_lds_and_barrier()
    q_stage_compute(V_D)
    q_publish(1)
    q_gather_addr(1)
    g.poll(q_gather_issue, [V_Q + i for i in range(4)], V_T, "q1")
    g.stamp()

    if cfg.RESIDENT:
        resident_v = list(range(128 - NVR, 128))
        vloads = list(range(127 - NVR, -1, -1))
        free = []
        vd = {}
        vs = {}
        st2 = {"issued": 0, "consumed": 0}

        def issue2():
            while st2["issued"] < len(vloads) and free and st2["issued"] - st2["consumed"] < cfg.DEPTH2:
                u = vloads[st2["issued"]]
                tile = free.pop(0)
                vs[u] = st.load("V", u, tile, cfg.FV2)
                vd[u] = tile
                st2["issued"] += 1
        NLR = 4
        ldsring = khome[:NLR]
        lds_issued = 0
        for t in range(128 + LAG):
            if t < 128:
                if t < NKR:
                    tile = khome[t]
                    qk_mfma(t, tile)
                    if t >= NLR:
                        free.append(tile)
                        issue2()
                    if t == NLR + 2:
                        for k in range(min(NLR, NKL)):
                            e("ds_read_b128 %s, v%d offset:%d" % (ldsring[k].r(), V_LT, k * 1024))
                        lds_issued = min(NLR, NKL)
                else:
                    k = t - NKR
                    tile = ldsring[k % NLR]
                    e("s_waitcnt lgkmcnt(%d)" % (lds_issued - k - 1))
                    qk_mfma(t, tile)
                    if lds_issued < NKL:
                        e("ds_read_b128 %s, v%d offset:%d" % (tile.r(), V_LT, lds_issued * 1024))
                        lds_issued += 1
            else:
                g.nop(4)
            if t - LAG >= 0:
                qk_adds(t - LAG)
            else:
                g.nop(3)
        free += ldsring
        issue2()
        g.stamp()
        woseq = load_wo(V_D, V_T + 3)
        softmax()
        g.stamp()
        order = resident_v + vloads
        pv_b(order[0], 0)
        for n, u in enumerate(order):
            if n + 1 < 128:
                pv_b(order[n + 1], (n + 1) & 1)
            else:
                g.nop(2)
            if u in vs:
                g.wait_vm(vs[u])
                tile = vd[u]
                st2["consumed"] += 1
            else:
                tile = vres[u]
            pv_mfma(tile, n & 1)
            free.append(tile)
            issue2()
    else:
        state["issued"] = state["consumed"] = 0
        seqs.clear(); dest.clear()
        for k in range(NVR):
            ring_free[k] = True
        for t in range(128 + LAG):
            if t < 128:
                issue_upto(cfg.DEPTH1)
                g.wait_vm(seqs[t])
                tile, s = dest[t]
                qk_mfma(t, tile)
                consumed(t)
                issue_upto(cfg.DEPTH1)
            else:
                g.nop(4)
            if t - LAG >= 0:
                qk_adds(t - LAG)
            else:
                g.nop(3)
        woseq = load_wo(V_D, V_T + 3)
        softmax()
        pv_b(0, 0)
        for u in range(128):
            i = 128 + u
            if u + 1 < 128:
                pv_b(u + 1, (u + 1) & 1)
            else:
                g.nop(2)
            g.wait_vm(seqs[i])
            tile, s = dest[i]
            pv_mfma(tile, u & 1)
            consumed(i)
            issue_upto(cfg.DEPTH1)
    g.stamp()
    attention_tail_and_chain(1)

    e("s_cmp_lg_u32 s2, 0")
    e("s_cbranch_scc1 L_end")
    x_gather(ITS + P2, 7)
    e("v_lshrrev_b32 v%d, 16, v%d" % (V_T, V_XR))
    e("v_and_b32 v%d, 0xffff0000, v%d" % (V_T + 1, V_XR + 1))
    e("v_or_b32 v%d, v%d, v%d" % (V_T, V_T, V_T + 1))
    e("v_lshlrev_b32 v%d, 2, v0" % (V_T + 1))
    g.vmem("buffer_store_dword v%d, v%d, %s, 0 offen" % (V_T, V_T + 1, srd(S_OUT)))
    g.stamp()
    g.label("L_end")
    e("s_endpgm")

    out.append("\n".join(g.L))
    out.append('.section .rodata,"a"\n.p2align 6\n.amdhsa_kernel %s' % KNAME)
    out.append("  .amdhsa_next_free_vgpr 512\n  .amdhsa_next_free_sgpr 102\n  .amdhsa_accum_offset 256\n"
               "  .amdhsa_group_segment_fixed_size 0\n  .amdhsa_kernarg_size 96\n  .amdhsa_user_sgpr_count 2\n"
               "  .amdhsa_user_sgpr_kernarg_segment_ptr 1\n  .amdhsa_system_sgpr_workgroup_id_x 1\n.end_amdhsa_kernel")
    return "\n".join(out) + "\n"


if __name__ == "__main__":
    cfg = Cfg()
    outp = "interleave_layers__gqa_block_cached__glu_gated_swiglu__decode.s"
    for a in sys.argv[1:]:
        if a.startswith("out="):
            outp = a[4:]
            continue
        k, v = a.split("=", 1)
        cur = getattr(cfg, k)
        if isinstance(cur, bool):
            v = v in ("1", "True", "true")
        elif isinstance(cur, int):
            v = int(v)
        setattr(cfg, k, v)
    s = generate(cfg)
    open(outp, "w").write(s)
    print("wrote", outp, len(s), "bytes", s.count("\n"), "lines")
```

```python
import sys, math, struct
from gen import HEADER, KNAME, f32bits, srd, vr, Tile, SCALE, LOG2E


class Cfg:
    NW = 144
    NL = 39
    DEPTH1 = 56
    DEPTH2 = 56
    DEPTH1V = 24
    FK1 = "nt"
    FV1 = "nt"
    FV2 = "nt"
    FW = ""
    STAMP = False
    STAMP2 = False
    SPIN = 2000000
    PRE = 14
    BK = 0
    IB = 8
    INA = 9
    IWIN = 3
    NOQ = False
    PFS = 0
    PF0 = 22
    W0 = 4
    WSP = 8
    WON = 0
    WOFF = 128
    WOFF2 = 0
    PF = 0
    XDS = 0
    XDE = 0
    XENC = -1
    IFIRST = 6
    P_A1 = 14
    P_OB = 14
    P_X1 = 14
    P_GU = 14
    P_X2 = 14
    P_Q = 14
    P_XF = 14
    PARK = True
    PGAP = 0
    KLD = 1
    KL0 = 0
    SML = 1000
    WO = 55
    WE = 50
    WE2 = 50
    WO2 = 0
    KX = 0
    WPOS = 1
    DSTAMP = False
    VDEF = 0
    XW = ""
    XEND = False
    XEND2 = 0
    VBAR = True
    XNOW = False
    XNOSM = False
    XNODS = False
    XNOQK = False
    XNOPV = False
    XNOPVB = False
    NOCLR = False
    IUP = 3
    IDLY = 3


ITS = 0x280000
QB, OB, P1, HB, P2, RML, RO = 0x0, 0x2000, 0x12000, 0x16000, 0x18000, 0x1C000, 0x40000
STAMP_OFF = 0x800000
QB0 = 0x600000
GU = 0x24000
L_XL = 0
L_RED = 2048
L_ST = 2816
L_GU = 3072
L_TILES = 4096

S_K, S_V, S_WQ, S_WO, S_W1, S_W3, S_W2, S_X, S_OUT, S_DBG, S_WS = [8 + 4 * i for i in range(11)]
S_WAVE, S_KVH, S_C, S_T0, S_T1, S_T2, S_SPIN, S_SOFF = 52, 53, 54, 55, 56, 57, 58, 59
S_EX = 60
S_CB, S_KS, S_CN = 62, 63, 64
S_R0, S_R1 = 65, 66
S_STATE = 67
S_STAMP = 68
S_PIV = 70
S_KSG = 71
S_SC = 96
S_P0 = 97
S_MLOK = 98
S_XCC = 99
S_KQ = 100
S_XO = 72
S_PM = 76

V_TID, V_LANE, V_KOFF, V_VOFF = 0, 1, 2, 3
V_Q = 4
V_O = 8
V_B = 16
V_M0, V_M1 = 20, 21
V_XR = 22
V_BP = 24
V_LT = 25
V_T = 26
V_Y = 32
V_D = 64
V_U = 80
V_DS = 23 + 0 if False else 3 * 0 + 255
V_WQ = 88
V_WO = 104
V_W13 = 120
V_W2 = 136


class G:
    def __init__(self, cfg):
        self.cfg = cfg
        self.L = []
        self.vm = 0
        self.vm_done = 0
        self.nlabel = 0
        self.nstamp = 0
        self.shadow = None

    def e(self, s):
        self.L.append("  " + s)

    def label(self, name):
        self.L.append(name + ":")

    def newlabel(self, p):
        self.nlabel += 1
        return "L_%s_%d" % (p, self.nlabel)

    def vmem(self, s, counted=True):
        self.e(s)
        if counted:
            self.vm += 1
            return self.vm - 1
        return None

    def wait_vm(self, seq):
        if seq < self.vm_done:
            return
        n = self.vm - seq - 1
        assert n <= 63, n
        self.e("s_waitcnt vmcnt(%d)" % n)
        self.vm_done = seq + 1

    def wait_side(self, pos):
        self.e("s_waitcnt vmcnt(%d)" % (self.vm - pos))

    def throttle(self, more, cap=56):
        if self.vm - self.vm_done + more > cap:
            self.wait_vm(self.vm + more - cap - 1)

    def lgkm0(self):
        self.e("s_waitcnt lgkmcnt(0)")

    def nop(self, n):
        while n > 0:
            k = min(n, 16)
            self.e("s_nop %d" % (k - 1))
            n -= k

    def stamp(self):
        if self.cfg.DSTAMP:
            i = self.nstamp
            self.nstamp += 1
            if i < 23:
                if i: self.e("s_memrealtime s[%d:%d]" % (S_STAMP, S_STAMP + 1))
                self.lgkm0()
                self.e("v_writelane_b32 v%d, s%d, %d" % (V_DS, S_STAMP, i))
            return
        if not self.cfg.STAMP:
            return
        i = self.nstamp
        self.nstamp += 1
        if i: self.e("s_memrealtime s[%d:%d]" % (S_STAMP, S_STAMP + 1))
        self.lgkm0()
        self.e("v_mov_b32 v%d, s%d" % (V_U + 6, S_STAMP))
        self.e("s_lshl_b32 s%d, s2, 10" % S_T0)
        self.e("s_lshl_b32 s%d, s%d, 8" % (S_T1, S_WAVE))
        self.e("s_add_u32 s%d, s%d, s%d" % (S_T0, S_T0, S_T1))
        self.e("s_add_u32 s%d, s%d, 0x%x" % (S_T0, S_T0, STAMP_OFF + 4 * i))
        self.e("v_mov_b32 v%d, 0" % (V_U + 7))
        self.vmem("buffer_store_dword v%d, v%d, %s, s%d offen" % (V_U + 6, V_U + 7, srd(S_WS), S_T0), counted=False)

    def bf16r(self, x, t):
        self.e("v_cvt_pk_bf16_f32 v%d, v%d, v%d" % (t, x, x))
        self.e("v_lshlrev_b32 v%d, 16, v%d" % (x, t))

    def check_sent(self, regs, tmp):
        regs = list(regs)
        if len(regs) == 1:
            m = regs[0]
        else:
            if len(regs) >= 3:
                self.e("v_max3_u32 v%d, v%d, v%d, v%d" % (tmp, regs[0], regs[1], regs[2]))
                i = 3
            else:
                self.e("v_max_u32 v%d, v%d, v%d" % (tmp, regs[0], regs[1]))
                i = 2
            while i < len(regs):
                if len(regs) - i >= 2:
                    self.e("v_max3_u32 v%d, v%d, v%d, v%d" % (tmp, tmp, regs[i], regs[i + 1]))
                    i += 2
                else:
                    self.e("v_max_u32 v%d, v%d, v%d" % (tmp, tmp, regs[i]))
                    i += 1
            m = tmp
        self.e("v_cmp_eq_u32 vcc, -1, v%d" % m)

    def poll(self, loads, tmp, name, pre=0, after=None):
        lab = self.newlabel(name)
        ok = lab + "_ok"
        if self.shadow is not None and pre:
            self.shadow(name)
        if pre:
            self.e("s_sleep %d" % pre)
        if after is not None:
            for _, regs in loads:
                for r in regs:
                    self.e("v_mov_b32 v%d, -1" % r)
        for fn, regs in loads:
            fn()
        if after is not None:
            pos = self.vm
            after()
            self.wait_side(pos)
        else:
            self.e("s_waitcnt vmcnt(0)")
        self.check_sent([r for _, regs in loads for r in regs], tmp)
        self.e("s_cbranch_vccz %s" % ok)
        n = len(loads)
        M = [S_PM + 2 * j for j in range(n)]
        for j in range(n):
            self.e("s_mov_b64 s[%d:%d], -1" % (M[j], M[j] + 1))
        self.label(lab)
        for j, (fn, regs) in enumerate(loads):
            self.e("s_mov_b64 exec, s[%d:%d]" % (M[j], M[j] + 1))
            self.e("s_cbranch_execz %s_c%d" % (lab, j))
            self.check_sent(regs, tmp)
            self.e("s_mov_b64 s[%d:%d], vcc" % (M[j], M[j] + 1))
            self.label("%s_c%d" % (lab, j))
        self.e("s_mov_b64 s[%d:%d], s[%d:%d]" % (S_EX, S_EX + 1, M[0], M[0] + 1))
        for j in range(1, n):
            self.e("s_or_b64 s[%d:%d], s[%d:%d], s[%d:%d]" % (S_EX, S_EX + 1, S_EX, S_EX + 1, M[j], M[j] + 1))
        self.e("s_cmp_eq_u64 s[%d:%d], 0" % (S_EX, S_EX + 1))
        self.e("s_cbranch_scc1 %s_x" % lab)
        if self.cfg.BK:
            self.e("s_sleep %d" % self.cfg.BK)
        for j, (fn, regs) in enumerate(loads):
            self.e("s_mov_b64 exec, s[%d:%d]" % (M[j], M[j] + 1))
            self.e("s_cbranch_execz %s_l%d" % (lab, j))
            fn()
            self.label("%s_l%d" % (lab, j))
        self.e("s_waitcnt vmcnt(0)")
        self.e("s_sub_u32 s%d, s%d, 1" % (S_SPIN, S_SPIN))
        self.e("s_cmp_gt_i32 s%d, 0" % S_SPIN)
        self.e("s_cbranch_scc1 %s" % lab)
        self.label(lab + "_x")
        self.e("s_mov_b64 exec, -1")
        self.label(ok)
        if after is None:
            self.vm_done = self.vm

    def allred_rows(self, x, t, op):
        self.e("v_mov_b32 v%d, v%d" % (t, x))
        self.nop(2)
        self.e("v_permlane32_swap_b32 v%d, v%d" % (x, t))
        self.nop(1)
        self.e("%s v%d, v%d, v%d" % (op, x, x, t))
        self.e("v_mov_b32 v%d, v%d" % (t, x))
        self.nop(2)
        self.e("v_permlane16_swap_b32 v%d, v%d" % (x, t))
        self.nop(1)
        self.e("%s v%d, v%d, v%d" % (op, x, x, t))

    def ror_red(self, regs, rors, op):
        for n in rors:
            pad = max(0, 3 - len(regs))
            self.nop(pad)
            for x in regs:
                self.e("%s_dpp v%d, v%d, v%d row_ror:%d row_mask:0xf bank_mask:0xf" % (op, x, x, x, n))

    def gemv8(self, wtiles, xregs, xlo, acc):
        for i, x in enumerate(xregs):
            self.e("v_lshrrev_b32 v%d, 16, v%d" % (xlo + i, x))
        for i, (w, x) in enumerate(zip(wtiles, xregs)):
            for d in range(4):
                if i == 0:
                    self.e("v_dot2_f32_bf16 v%d, v%d, v%d, 0" % (acc + 2 * d, w + d, xlo + i))
                    self.e("v_dot2_f32_bf16 v%d, v%d, v%d, 0" % (acc + 2 * d + 1, w + d, x))
                else:
                    self.e("v_dot2c_f32_bf16 v%d, v%d, v%d" % (acc + 2 * d, w + d, xlo + i))
                    self.e("v_dot2c_f32_bf16 v%d, v%d, v%d" % (acc + 2 * d + 1, w + d, x))

    def red_addr(self, taddr, t):
        self.e("v_and_b32 v%d, 1, v%d" % (taddr, V_LANE))
        self.e("v_lshlrev_b32 v%d, 5, v%d" % (taddr, taddr))
        self.e("v_lshrrev_b32 v%d, 4, v%d" % (t, V_LANE))
        self.e("v_lshl_add_u32 v%d, v%d, 3, v%d" % (taddr, t, taddr))
        self.e("s_lshl_b32 s%d, s%d, 6" % (S_T0, S_WAVE))
        self.e("v_add_u32 v%d, s%d, v%d" % (taddr, S_T0, taddr))

    def reduce8_to_lds(self, acc, taddr, red):
        self.nop(3)
        for j in range(4):
            self.e("v_permlane32_swap_b32 v%d, v%d" % (acc + j, acc + j + 4))
        self.nop(1)
        for j in range(4):
            self.e("v_add_f32 v%d, v%d, v%d" % (acc + j, acc + j, acc + j + 4))
        self.nop(1)
        for j in range(2):
            self.e("v_permlane16_swap_b32 v%d, v%d" % (acc + j, acc + j + 2))
        self.nop(1)
        for j in range(2):
            self.e("v_add_f32 v%d, v%d, v%d" % (acc + j, acc + j, acc + j + 2))
        self.ror_red([acc, acc + 1], [8, 4, 2], "v_add_f32")
        self.e("ds_write_b64 v%d, %s offset:%d" % (taddr, vr(acc, 2), red))
        self.lgkm0()
        self.e("s_barrier")

    def sum4_pairs(self, dst, tmp, taddr8, red):
        for w in range(4):
            self.e("ds_read_b64 %s, v%d offset:%d" % (vr(tmp + 2 * w, 2), taddr8, red + 64 * w))
        self.lgkm0()
        self.e("v_pk_add_f32 %s, %s, %s" % (vr(tmp, 2), vr(tmp, 2), vr(tmp + 2, 2)))
        self.e("v_pk_add_f32 %s, %s, %s" % (vr(tmp + 4, 2), vr(tmp + 4, 2), vr(tmp + 6, 2)))
        self.e("v_pk_add_f32 %s, %s, %s" % (vr(dst, 2), vr(tmp, 2), vr(tmp + 4, 2)))

    def exec_lanes(self, n):
        if n < 64:
            self.e("s_mov_b64 exec, 0x%x" % ((1 << n) - 1))

    def exec_all(self):
        self.e("s_mov_b64 exec, -1")


def generate(cfg):
    g = G(cfg)
    e = g.e
    NW, NL = cfg.NW, cfg.NL
    regtiles = [Tile("a", 4 * i) for i in range(64)] + [Tile("v", b) for b in range(NW, 252 if cfg.DSTAMP else 256, 4)]
    NRT = len(regtiles)
    NKL = NL
    NKR = 128 - NKL
    NVR = NRT - NKR
    assert NVR >= 1
    slots = regtiles[:NKR]
    perm0 = regtiles[NKR:NKR + NVR]
    dtiles = [Tile("v", V_D + 4 * k) for k in range(4)]
    ytiles = [Tile("v", V_Y + 4 * k) for k in range(8)]
    if cfg.PARK:
        perm = ytiles[2:6] + dtiles + perm0 + [ytiles[6]]
    else:
        perm = perm0
    NVR = len(perm)
    def kslot(t):
        return slots[t] if t < NKR else slots[t - NKR]
    lds_bytes = L_TILES + 4 * NL * 1024
    assert lds_bytes <= 163840, lds_bytes

    out = [HEADER + "; @launch grid=(256,1,1) block=(256,1,1) lds=%d" % lds_bytes]
    out.append('.amdgcn_target "amdgcn-amd-amdhsa--gfx950"\n.text\n.globl %s\n.p2align 8\n.type %s,@function\n%s:' % (KNAME, KNAME, KNAME))

    e("s_cmp_ge_u32 s2, 256")
    e("s_cbranch_scc1 L_end")
    if cfg.STAMP or cfg.DSTAMP:
        e("s_memrealtime s[%d:%d]" % (S_STAMP, S_STAMP + 1))
    if cfg.XDS:
        e("s_memrealtime s[72:73]")
        g.lgkm0()
        e("s_add_u32 s74, s72, %d" % (cfg.XDS * 100))
        g.label("L_xds")
        e("s_memrealtime s[76:77]")
        g.lgkm0()
        e("s_sub_u32 s78, s74, s76")
        e("s_cmp_gt_i32 s78, 0")
        e("s_cbranch_scc1 L_xds")
    e("s_load_dwordx16 s[72:87], s[0:1], 0")
    e("s_load_dwordx8 s[88:95], s[0:1], 64")
    e("v_and_b32 v%d, 63, v0" % V_LANE)
    e("v_lshrrev_b32 v%d, 6, v0" % V_T)
    e("s_nop 0")
    e("v_readfirstlane_b32 s%d, v%d" % (S_WAVE, V_T))
    e("s_and_b32 s%d, s2, 7" % S_KVH)
    if cfg.KX:
        e("s_xor_b32 s%d, s%d, %d" % (S_KVH, S_KVH, cfg.KX))
    e("s_lshr_b32 s%d, s2, 3" % S_C)
    e("s_mov_b32 s%d, %d" % (S_SPIN, cfg.SPIN))
    e("s_and_b32 s%d, s2, 7" % S_CB)
    e("s_mul_i32 s%d, s%d, 7" % (S_CB, S_CB))
    e("s_lshr_b32 s%d, s%d, 2" % (S_T0, S_C))
    e("s_add_u32 s%d, s%d, s%d" % (S_CB, S_CB, S_T0))
    e("s_and_b32 s%d, s%d, 3" % (S_KQ, S_C))
    e("s_lshr_b32 s%d, s2, 5" % S_KS)
    e("s_min_u32 s%d, s%d, 6" % (S_KSG, S_KS))
    e("s_and_b32 s%d, s%d, 3" % (S_CN, S_C))
    e("s_lshl_b32 s%d, s%d, 2" % (S_T0, S_KVH))
    e("s_or_b32 s%d, s%d, s%d" % (S_CN, S_CN, S_T0))
    e("s_mov_b32 s%d, 0x%x" % (S_SC, f32bits(SCALE)))
    e("s_mov_b32 s%d, 0" % S_STATE)
    e("s_getreg_b32 s%d, hwreg(HW_REG_XCC_ID)" % S_XCC)
    e("s_lshl_b32 s%d, s%d, 24" % (S_T0, S_KVH))
    e("s_lshl_b32 s%d, s%d, 19" % (S_T1, S_C))
    e("s_add_u32 s%d, s%d, s%d" % (S_T0, S_T0, S_T1))
    e("s_lshl_b32 s%d, s%d, 17" % (S_T1, S_WAVE))
    e("s_add_u32 s%d, s%d, s%d" % (S_T0, S_T0, S_T1))
    e("v_lshlrev_b32 v%d, 4, v%d" % (V_VOFF, V_LANE))
    e("s_mul_i32 s%d, s%d, %d" % (S_T1, S_WAVE, NL * 1024))
    e("s_add_u32 s%d, s%d, %d" % (S_T1, S_T1, L_TILES))
    e("v_add_u32 v%d, s%d, v%d" % (V_LT, S_T1, V_VOFF))
    e("v_add_u32 v%d, s%d, v%d" % (V_VOFF, S_T0, V_VOFF))
    e("v_bfe_u32 v%d, v%d, 2, 2" % (V_T, V_LANE))
    e("v_lshlrev_b32 v%d, 8, v%d" % (V_KOFF, V_T))
    e("v_lshrrev_b32 v%d, 4, v%d" % (V_T + 1, V_LANE))
    e("v_lshl_add_u32 v%d, v%d, 6, v%d" % (V_KOFF, V_T + 1, V_KOFF))
    e("v_and_b32 v%d, 3, v%d" % (V_T + 2, V_LANE))
    e("v_lshl_add_u32 v%d, v%d, 4, v%d" % (V_KOFF, V_T + 2, V_KOFF))
    e("v_add_u32 v%d, s%d, v%d" % (V_KOFF, S_T0, V_KOFF))
    e("v_and_b32 v%d, 48, v%d" % (V_BP, V_LANE))
    e("v_lshl_add_u32 v%d, v%d, 2, v%d" % (V_BP, V_T + 2, V_BP))
    e("v_add_u32 v%d, v%d, v%d" % (V_BP, V_BP, V_T))
    e("v_lshlrev_b32 v%d, 2, v%d" % (V_BP, V_BP))
    e("v_and_b32 v%d, 1, v%d" % (V_T + 3, V_LANE))
    e("v_lshlrev_b32 v%d, 4, v%d" % (V_T + 3, V_T + 3))
    e("v_mov_b32 v%d, 0xffff" % (V_T + 4))
    e("v_lshlrev_b32 v%d, v%d, v%d" % (V_T + 4, V_T + 3, V_T + 4))
    e("v_and_b32 v%d, 2, v%d" % (V_T + 3, V_LANE))
    e("v_cmp_eq_u32 vcc, 0, v%d" % (V_T + 3))
    e("v_mov_b32 v%d, 0" % (V_T + 5))
    e("s_nop 1")
    e("v_cndmask_b32 v%d, v%d, v%d, vcc" % (V_M0, V_T + 5, V_T + 4))
    e("v_cndmask_b32 v%d, v%d, v%d, vcc" % (V_M1, V_T + 4, V_T + 5))
    def build_srd(s_, src, nbytes):
        e("s_mov_b32 s%d, s%d" % (s_, src))
        e("s_and_b32 s%d, s%d, 0xffff" % (s_ + 1, src + 1))
        e("s_mov_b32 s%d, 0x%x" % (s_ + 2, nbytes))
        e("s_mov_b32 s%d, 0x00020000" % (s_ + 3))

    def load_wq(dst, taddr):
        if cfg.XNOW: return g.vm - 1
        e("v_lshrrev_b32 v%d, 1, v%d" % (taddr, V_LANE))
        e("v_lshlrev_b32 v%d, 15, v%d" % (taddr, taddr))
        e("v_and_b32 v%d, 1, v%d" % (taddr + 1, V_LANE))
        e("v_lshl_add_u32 v%d, v%d, 4, v%d" % (taddr, taddr + 1, taddr))
        e("s_lshl_b32 s%d, s%d, 20" % (S_T0, S_WAVE))
        e("s_lshl_b32 s%d, s%d, 10" % (S_T1, S_KVH))
        e("s_add_u32 s%d, s%d, s%d" % (S_T0, S_T0, S_T1))
        e("s_lshl_b32 s%d, s%d, 5" % (S_T1, S_C))
        e("s_add_u32 s%d, s%d, s%d" % (S_T0, S_T0, S_T1))
        g.throttle(4)
        seq = None
        for i in range(4):
            seq = g.vmem("buffer_load_dwordx4 %s, v%d, %s, s%d offen %s" % (vr(dst + 4 * i, 4), taddr, srd(S_WQ), S_T0, cfg.FW))
            if i < 3:
                e("s_add_u32 s%d, s%d, 8192" % (S_T0, S_T0))
        return seq

    def load_wo(dst, taddr):
        if cfg.XNOW: return g.vm - 1
        e("v_lshrrev_b32 v%d, 4, v%d" % (taddr, V_LANE))
        e("v_lshlrev_b32 v%d, 15, v%d" % (taddr, taddr))
        e("v_bfe_u32 v%d, v%d, 1, 3" % (taddr + 1, V_LANE))
        e("v_lshl_add_u32 v%d, v%d, 10, v%d" % (taddr, taddr + 1, taddr))
        e("v_and_b32 v%d, 1, v%d" % (taddr + 1, V_LANE))
        e("v_lshl_add_u32 v%d, v%d, 4, v%d" % (taddr, taddr + 1, taddr))
        e("s_lshl_b32 s%d, s%d, 17" % (S_T0, S_WAVE))
        e("s_lshl_b32 s%d, s%d, 19" % (S_T1, S_KVH))
        e("s_add_u32 s%d, s%d, s%d" % (S_T0, S_T0, S_T1))
        e("s_lshl_b32 s%d, s%d, 5" % (S_T1, S_C))
        e("s_add_u32 s%d, s%d, s%d" % (S_T0, S_T0, S_T1))
        g.throttle(4)
        for i in range(4):
            g.vmem("buffer_load_dwordx4 %s, v%d, %s, s%d offen %s" % (vr(dst + 4 * i, 4), taddr, srd(S_WO), S_T0, cfg.FW))
            if i < 3:
                e("s_add_u32 s%d, s%d, 8192" % (S_T0, S_T0))

    def load_w13(dst, taddr):
        if cfg.XNOW: return g.vm - 1
        e("v_lshrrev_b32 v%d, 2, v%d" % (taddr, V_LANE))
        e("v_mul_u32_u24 v%d, 7168, v%d" % (taddr, taddr))
        e("v_and_b32 v%d, 3, v%d" % (taddr + 1, V_LANE))
        e("v_lshl_add_u32 v%d, v%d, 4, v%d" % (taddr, taddr + 1, taddr))
        e("s_lshl_b32 s%d, s%d, 2" % (S_T0, S_KQ))
        e("s_add_u32 s%d, s%d, s%d" % (S_T0, S_T0, S_WAVE))
        e("s_mul_i32 s%d, s%d, %d" % (S_T0, S_T0, 32 * 3584))
        e("s_lshl_b32 s%d, s%d, 6" % (S_T1, S_CB))
        e("s_add_u32 s%d, s%d, s%d" % (S_T0, S_T0, S_T1))
        g.throttle(4)
        for m, sr in enumerate((S_W1, S_W3)):
            for i in range(2):
                g.vmem("buffer_load_dwordx4 %s, v%d, %s, s%d offen offset:%d %s" % (vr(dst + 8 * m + 4 * i, 4), taddr, srd(sr), S_T0, 3584 * i, cfg.FW))

    def load_w2(dst, taddr):
        if cfg.XNOW: return g.vm - 1
        e("v_lshrrev_b32 v%d, 1, v%d" % (taddr, V_LANE))
        e("v_lshlrev_b32 v%d, 11, v%d" % (taddr, taddr))
        e("v_and_b32 v%d, 1, v%d" % (taddr + 1, V_LANE))
        e("v_lshl_add_u32 v%d, v%d, 4, v%d" % (taddr, taddr + 1, taddr))
        e("s_lshl_b32 s%d, s%d, 16" % (S_T0, S_WAVE))
        e("s_lshl_b32 s%d, s%d, 18" % (S_T1, S_KS))
        e("s_add_u32 s%d, s%d, s%d" % (S_T0, S_T0, S_T1))
        e("s_lshl_b32 s%d, s%d, 5" % (S_T1, S_CN))
        e("s_add_u32 s%d, s%d, s%d" % (S_T0, S_T0, S_T1))
        g.throttle(2)
        for i in range(2):
            g.vmem("buffer_load_dwordx4 %s, v%d, %s, s%d offen offset:%d %s" % (vr(dst + 4 * i, 4), taddr, srd(S_W2), S_T0, 1024 * i, cfg.FW))

    class Stream:
        def __init__(self):
            self.cur_soff = None
            self.we = cfg.WE
            self.wo = cfg.WO
            self.n = 0
            self.p1 = True

        def load(self, which, idx, tile, flags):
            base = (idx >> 2) * 4096
            if self.cur_soff != base:
                e("s_mov_b32 s%d, 0x%x" % (S_SOFF, base))
                self.cur_soff = base
            sr, vo = (S_K, V_KOFF) if which == "K" else (S_V, V_VOFF)
            if self.we and not (self.p1 and which == "K" and idx < cfg.WON) and not (self.p1 and which == "V" and idx >= cfg.WOFF) and not (not self.p1 and idx < cfg.WOFF2):
                lab = g.newlabel("th")
                e("s_bitcmp1_b32 s%d, 0" % S_XCC)
                e("s_cbranch_scc1 %s" % lab)
                self.n += 1
                frac = lambda w10: int((self.n * w10) // 10 - ((self.n - 1) * w10) // 10)
                e("s_waitcnt vmcnt(%d)" % frac(self.we))
                g.label(lab)
                if self.wo:
                    e("s_waitcnt vmcnt(%d)" % frac(self.wo))
            return g.vmem("buffer_load_dwordx4 %s, v%d, %s, s%d offen offset:%d %s" % (tile.r(), vo, srd(sr), S_SOFF, (idx & 3) * 1024, flags))

    st = Stream()
    stslot = [0]

    def x_to_lds_and_barrier():
        slot = stslot[0]
        stslot[0] ^= 1
        d0, d1, s1, s2 = V_T, V_T + 1, V_T + 2, V_T + 3
        e("v_lshlrev_b32 v%d, 3, v0" % (V_T + 4))
        e("ds_write_b64 v%d, %s offset:%d" % (V_T + 4, vr(V_XR, 2), L_XL))
        e("v_subrev_f32 v%d, s%d, v%d" % (d0, S_PIV, V_XR))
        e("v_subrev_f32 v%d, s%d, v%d" % (d1, S_PIV, V_XR + 1))
        e("v_add_f32 v%d, v%d, v%d" % (s1, d0, d1))
        e("v_mul_f32 v%d, v%d, v%d" % (s2, d0, d0))
        e("v_fmac_f32 v%d, v%d, v%d" % (s2, d1, d1))
        e("v_lshrrev_b32 v%d, 4, v0" % (V_T + 4))
        e("v_lshlrev_b32 v%d, 3, v%d" % (V_T + 4, V_T + 4))
        g.ror_red([s1, s2], [8, 4, 2, 1], "v_add_f32")
        e("ds_write_b64 v%d, %s offset:%d" % (V_T + 4, vr(s1, 2), L_ST + 128 * slot))
        g.lgkm0()
        e("s_barrier")
        return slot

    def ln_finish(slot, mine, nmine, t):
        s1, s2, a = t, t + 1, t + 2
        g.ror_red([s1, s2], [8, 4, 2, 1], "v_add_f32")
        inv = f32bits(1.0 / 512)
        e("v_mul_f32 v%d, 0x%x, v%d" % (s1, inv, s1))
        e("v_mul_f32 v%d, 0x%x, v%d" % (s2, inv, s2))
        e("v_fma_f32 v%d, -v%d, v%d, v%d" % (s2, s1, s1, s2))
        e("v_max_f32 v%d, 0, v%d" % (s2, s2))
        e("v_add_f32 v%d, s%d, v%d" % (s1, S_PIV, s1))
        e("v_cvt_pk_bf16_f32 v%d, v%d, v%d" % (a, s1, s2))
        e("v_lshlrev_b32 v%d, 16, v%d" % (s1, a))
        e("v_and_b32 v%d, 0xffff0000, v%d" % (s2, a))
        e("v_add_f32 v%d, 0x%x, v%d" % (s2, f32bits(1e-5), s2))
        g.bf16r(s2, a)
        e("v_sqrt_f32 v%d, v%d" % (s2, s2))
        for i in range(nmine):
            e("v_sub_f32 v%d, v%d, v%d" % (mine + i, mine + i, s1))
        g.bf16r(s2, a)
        e("v_rcp_f32 v%d, v%d" % (s2, s2))
        for i in range(0, nmine, 2):
            e("v_cvt_pk_bf16_f32 v%d, v%d, v%d" % (a, mine + i, mine + i + 1))
            e("v_lshlrev_b32 v%d, 16, v%d" % (mine + i, a))
            e("v_and_b32 v%d, 0xffff0000, v%d" % (mine + i + 1, a))
        for i in range(nmine):
            e("v_mul_f32 v%d, v%d, v%d" % (mine + i, mine + i, s2))
        for i in range(0, nmine, 2):
            e("v_cvt_pk_bf16_f32 v%d, v%d, v%d" % (a, mine + i, mine + i + 1))
            e("v_lshlrev_b32 v%d, 16, v%d" % (mine + i, a))
            e("v_and_b32 v%d, 0xffff0000, v%d" % (mine + i + 1, a))

    def q_stage_compute(slot, wregs, scr):
        mine, acc, t, xlo = V_B, V_O, V_U, scr
        e("v_and_b32 v%d, 15, v%d" % (V_T, V_LANE))
        e("v_lshlrev_b32 v%d, 3, v%d" % (V_T, V_T))
        e("ds_read_b64 %s, v%d offset:%d" % (vr(t, 2), V_T, L_ST + 128 * slot))
        e("v_lshrrev_b32 v%d, 1, v%d" % (V_T + 1, V_LANE))
        e("v_lshlrev_b32 v%d, 4, v%d" % (V_T + 1, V_T + 1))
        e("s_lshl_b32 s%d, s%d, 9" % (S_T0, S_WAVE))
        e("v_add_u32 v%d, s%d, v%d" % (V_T + 1, S_T0, V_T + 1))
        e("ds_read_b128 %s, v%d offset:%d" % (vr(mine, 4), V_T + 1, L_XL))
        g.red_addr(V_T + 2, V_T + 3)
        e("v_and_b32 v%d, 7, v%d" % (V_T + 3, V_LANE))
        e("v_lshlrev_b32 v%d, 3, v%d" % (V_T + 3, V_T + 3))
        g.lgkm0()
        ln_finish(slot, mine, 4, t)
        g.gemv8([wregs + 4 * i for i in range(4)], [mine + i for i in range(4)], xlo, acc)
        g.reduce8_to_lds(acc, V_T + 2, L_RED)
        g.sum4_pairs(V_U, V_O, V_T + 3, L_RED)
        e("v_cvt_pk_bf16_f32 v%d, v%d, v%d" % (V_U + 2, V_U, V_U + 1))
        e("v_min_u32 v%d, -2, v%d" % (V_U + 2, V_U + 2))
        e("v_lshlrev_b32 v%d, 2, v%d" % (V_U + 3, V_LANE))

    def q_pub_addr(it):
        e("s_lshl_b32 s%d, s%d, 10" % (S_P0, S_KVH))
        e("s_lshl_b32 s%d, s%d, 5" % (S_T1, S_C))
        e("s_add_u32 s%d, s%d, s%d" % (S_P0, S_P0, S_T1))
        e("s_add_u32 s%d, s%d, 0x%x" % (S_P0, S_P0, (ITS + QB if it else QB0)))

    def wave0_store(instr, nlanes, extra_skip=None):
        lab = g.newlabel("w0")
        e("s_cmp_lg_u32 s%d, 0" % S_WAVE)
        e("s_cbranch_scc1 %s" % lab)
        if extra_skip:
            e(extra_skip)
            e("s_cbranch_scc1 %s" % lab)
        g.exec_lanes(nlanes)
        g.vmem(instr, counted=False)
        g.exec_all()
        g.label(lab)

    def q_publish():
        wave0_store("buffer_store_dword v%d, v%d, %s, s%d offen sc1" % (V_U + 2, V_U + 3, srd(S_WS), S_P0), 8)

    def q_gather_addr(it, va):
        e("v_and_b32 v%d, 3, v%d" % (va, V_LANE))
        e("v_lshlrev_b32 v%d, 8, v%d" % (va, va))
        e("v_lshrrev_b32 v%d, 2, v%d" % (va + 1, V_LANE))
        e("v_lshl_add_u32 v%d, v%d, 4, v%d" % (va, va + 1, va))
        e("s_lshl_b32 s%d, s%d, 10" % (S_R0, S_KVH))
        e("s_add_u32 s%d, s%d, 0x%x" % (S_R0, S_R0, (ITS + QB if it else QB0)))

    def q_gather_issue(va):
        g.vmem("buffer_load_dwordx4 %s, v%d, %s, s%d offen sc1" % (vr(V_Q, 4), va, srd(S_WS), S_R0), counted=False)

    dring = [[V_D, V_D + 4, V_D + 8, V_D + 12]]

    def qk_mfma(t, tile, n):
        if cfg.XNOQK: return
        d = dring[0][n & 3]
        e("v_mfma_f32_16x16x32_bf16 %s, %s, %s, 0" % (vr(d, 4), tile.r(), vr(V_Q, 4)))

    def qk_adds(t, n):
        if cfg.XNOQK: return
        d = dring[0][n & 3]
        G_, c4 = t >> 2, t & 3
        y = V_Y + G_
        first = True
        for q in range(4):
            if q == c4:
                continue
            n = 4 * ((c4 - q) & 3)
            src1 = d + c4 if first else y
            e("v_add_f32_dpp v%d, v%d, v%d row_ror:%d row_mask:0xf bank_mask:0x%x" % (y, d + q, src1, n, 1 << c4))
            first = False

    def softmax(it, hook=None):
        if cfg.XNOSM: return
        m, l, t = V_T, V_T + 1, V_T + 2
        e("v_max3_f32 v%d, v%d, v%d, v%d" % (m, V_Y, V_Y + 1, V_Y + 2))
        for i in range(3, 31, 2):
            e("v_max3_f32 v%d, v%d, v%d, v%d" % (m, m, V_Y + i, V_Y + i + 1))
        e("v_max_f32 v%d, v%d, v%d" % (m, m, V_Y + 31))
        g.ror_red([m], [8, 4], "v_max_f32")
        g.allred_rows(m, t, "v_max_f32")
        e("v_mul_f32 v%d, s%d, v%d" % (t, S_SC, m))
        e("v_mov_b32 v%d, 0" % l)
        for i in range(32):
            e("v_fma_f32 v%d, v%d, s%d, -v%d" % (V_Y + i, V_Y + i, S_SC, t))
        for i in range(32):
            e("v_exp_f32 v%d, v%d" % (V_Y + i, V_Y + i))
            if hook and i % 8 == 0: hook()
        for i in range(32):
            e("v_add_f32 v%d, v%d, v%d" % (l, l, V_Y + i))
            e("v_cvt_pk_bf16_f32 v%d, v%d, v%d" % (V_Y + i, V_Y + i, V_Y + i))
            if hook and i % 8 == 0: hook()
        for i in range(32):
            e("ds_bpermute_b32 v%d, v%d, v%d" % (V_Y + i, V_BP, V_Y + i))
            if i % 8 == 7:
                g.lgkm0()
        g.ror_red([l], [8, 4], "v_add_f32")
        g.allred_rows(l, t, "v_add_f32")
        e("v_min_u32 v%d, -2, v%d" % (m, m))
        e("v_min_u32 v%d, -2, v%d" % (l, l))
        e("v_lshlrev_b32 v%d, 10, v%d" % (t, V_LANE))
        e("s_lshl_b32 s%d, s%d, 12" % (S_T0, S_KVH))
        e("s_lshl_b32 s%d, s%d, 5" % (S_T1, S_C))
        e("s_add_u32 s%d, s%d, s%d" % (S_T0, S_T0, S_T1))
        e("s_lshl_b32 s%d, s%d, 3" % (S_T1, S_WAVE))
        e("s_add_u32 s%d, s%d, s%d" % (S_T0, S_T0, S_T1))
        e("s_add_u32 s%d, s%d, 0x%x" % (S_T0, S_T0, it * ITS + RML))
        g.exec_lanes(4)
        g.vmem("buffer_store_dwordx2 %s, v%d, %s, s%d offen sc1" % (vr(m, 2), t, srd(S_WS), S_T0), counted=False)
        g.exec_all()
        for i in range(8):
            e("v_mov_b32 v%d, 0" % (V_O + i))

    def ml_addr(it):
        e("v_lshlrev_b32 v%d, 4, v%d" % (V_T, V_LANE))
        e("v_lshrrev_b32 v%d, 2, v%d" % (V_T + 1, V_LANE))
        e("v_lshlrev_b32 v%d, 4, v%d" % (V_T + 1, V_T + 1))
        e("s_lshl_b32 s%d, s%d, 8" % (S_T0, S_WAVE))
        e("v_add_u32 v%d, s%d, v%d" % (V_T + 1, S_T0, V_T + 1))
        e("s_lshl_b32 s%d, s%d, 12" % (S_R1, S_KVH))
        e("s_lshr_b32 s%d, s%d, 3" % (S_T0, S_C))
        e("s_lshl_b32 s%d, s%d, 10" % (S_T0, S_T0))
        e("s_add_u32 s%d, s%d, s%d" % (S_R1, S_R1, S_T0))
        e("s_add_u32 s%d, s%d, 0x%x" % (S_R1, S_R1, it * ITS + RML))

    def ml_issue(counted):
        g.vmem("buffer_load_dwordx4 %s, v%d, %s, s%d offen sc1" % (vr(V_U, 4), V_T, srd(S_WS), S_R1), counted=counted)
        return g.vmem("buffer_load_dwordx4 %s, v%d, %s, s%d offen sc1" % (vr(V_U + 4, 4), V_T + 1, srd(S_WS), S_R1), counted=counted)

    def ml_compute():
        M, Lr, t = V_T + 2, V_T + 3, V_T + 4
        e("v_max_f32 v%d, v%d, v%d" % (M, V_U, V_U + 2))
        g.ror_red([M], [8, 4, 2, 1], "v_max_f32")
        g.allred_rows(M, t, "v_max_f32")
        e("v_mul_f32 v%d, s%d, v%d" % (M, S_SC, M))
        for k in (0, 2, 4, 6):
            e("v_fma_f32 v%d, v%d, s%d, -v%d" % (V_U + k, V_U + k, S_SC, M))
        for k in (0, 2, 4, 6):
            e("v_exp_f32 v%d, v%d" % (V_U + k, V_U + k))
        g.nop(1)
        e("v_mul_f32 v%d, v%d, v%d" % (Lr, V_U, V_U + 1))
        e("v_fmac_f32 v%d, v%d, v%d" % (Lr, V_U + 2, V_U + 3))
        g.ror_red([Lr], [8, 4, 2, 1], "v_add_f32")
        g.allred_rows(Lr, t, "v_add_f32")
        e("v_rcp_f32 v%d, v%d" % (Lr, Lr))
        g.nop(1)
        e("v_mul_f32 v%d, v%d, v%d" % (V_U, V_U + 4, Lr))
        e("v_mul_f32 v%d, v%d, v%d" % (V_U + 1, V_U + 6, Lr))

    def ml_try_check(seq):
        lab = g.newlabel("mlt")
        g.wait_side(seq)
        g.check_sent([V_U + k for k in range(8)], V_T + 2)
        e("s_mov_b32 s%d, 0" % S_MLOK)
        e("s_cbranch_vccnz %s" % lab)
        ml_compute()
        e("s_mov_b32 s%d, 1" % S_MLOK)
        g.label(lab)

    def pv_b(u, slot):
        if cfg.XNOPVB: return
        G_, c4 = u >> 2, u & 3
        b = V_B + 2 * slot
        qp = "quad_perm:[%d,%d,%d,%d] row_mask:0xf bank_mask:0xf" % (c4, c4, c4, c4)
        e("v_and_b32_dpp v%d, v%d, v%d %s" % (b, V_Y + G_, V_M0, qp))
        e("v_and_b32_dpp v%d, v%d, v%d %s" % (b + 1, V_Y + G_, V_M1, qp))

    def pv_mfma(tile, slot):
        if cfg.XNOPV: return
        b = V_B + 2 * slot
        e("v_mfma_f32_16x16x16_bf16 %s, %s, %s, %s" % (vr(V_O, 4), tile.r(0, 2), vr(b, 2), vr(V_O, 4)))
        e("v_mfma_f32_16x16x16_bf16 %s, %s, %s, %s" % (vr(V_O + 4, 4), tile.r(2, 2), vr(b, 2), vr(V_O + 4, 4)))

    loads = [("K", t) for t in range(128)] + [("V", u) for u in range(128)]
    dest, seqs = {}, {}
    state = {"issued": 0, "consumed": 0}
    pool = []
    perm_free = [any(p is q for q in perm0) for p in perm]

    def release(tile):
        for k, p in enumerate(perm):
            if p is tile:
                perm_free[k] = True
                return
        pool.append(tile)
    retire = set()

    def issue_one():
        i = state["issued"]
        which, idx = loads[i]
        kind = None
        if which == "K":
            if idx >= NKR and state["consumed"] <= idx - NKR:
                return False
            tile = kslot(idx)
        else:
            if idx >= 128 - NVR:
                k = idx - (128 - NVR)
                if not perm_free[k]:
                    return False
                tile, kind = perm[k], ("perm", k)
            elif pool:
                tile, kind = pool.pop(0), ("pool", None)
            else:
                ks = [k for k in range(NVR) if perm_free[k]]
                if not ks or idx >= 128 - NVR - cfg.PGAP:
                    return False
                tile, kind = perm[ks[0]], ("perm", ks[0])
            if kind[0] == "perm":
                perm_free[kind[1]] = False
        g.throttle(1)
        seqs[i] = st.load(which, idx, tile, cfg.FK1 if which == "K" else ("" if cfg.VDEF <= idx < 128 - NVR else cfg.FV1))
        dest[i] = (tile, kind)
        state["issued"] += 1
        return True

    def issue_n(n):
        for _ in range(n):
            assert issue_one()

    def issue_upto(depth):
        while state["issued"] < len(loads) and state["issued"] - state["consumed"] < depth:
            if not issue_one():
                break

    def consumed(i):
        tile, kind = dest[i]
        if kind is not None:
            if kind[0] == "perm":
                perm_free[kind[1]] = True
            elif id(tile) not in retire:
                pool.append(tile)
        state["consumed"] = i + 1

    utiles = [Tile("v", V_U), Tile("v", V_U + 4)]

    g.lgkm0()
    build_srd(S_K, 74, 1 << 27)
    e("s_load_dword s%d, s[72:73], 0" % S_PIV)
    issue_n(cfg.IFIRST)
    for (s_, src, nbytes) in [(S_X, 72, 1024), (S_WQ, 78, 512 * 4096 * 2), (S_WS, 94, 1 << 29), (S_V, 76, 1 << 27),
                              (S_WO, 80, 4096 * 512 * 2), (S_W1, 84, 512 * 1792 * 2), (S_W3, 86, 512 * 1792 * 2),
                              (S_W2, 88, 1792 * 512 * 2), (S_OUT, 90, 1024), (S_DBG, 92, 256)]:
        build_srd(s_, src, nbytes)
    e("v_lshlrev_b32 v%d, 2, v0" % (V_U + 5))
    xseq = g.vmem("buffer_load_dword v%d, v%d, %s, 0 offen" % (V_XR, V_U + 5, srd(S_X)))
    for k in range(4):
        e("v_mov_b32 v%d, -1" % (V_U + k))
    e("v_lshlrev_b32 v%d, 4, v0" % (V_U + 4))
    e("s_mul_i32 s%d, s2, 9216" % S_T0)
    for k in range(2):
        g.vmem("buffer_store_dwordx4 %s, v%d, %s, s%d offen sc1" % (vr(V_U, 4), V_U + 4, srd(S_WS), S_T0), counted=False)
        e("s_add_u32 s%d, s%d, 4096" % (S_T0, S_T0))
    wave0_store("buffer_store_dwordx4 %s, v%d, %s, s%d offen sc1" % (vr(V_U, 4), V_U + 4, srd(S_WS), S_T0), 64)

    if cfg.XW:
        e("s_waitcnt vmcnt(0)")
        g.stamp()
        for nm, fn, r in (("q", load_wq, V_WQ), ("o", load_wo, V_WO), ("g", load_w13, V_W13), ("d", load_w2, V_W2)):
            if nm in cfg.XW:
                fn(r, V_T)
                if "s" in cfg.XW:
                    e("s_waitcnt vmcnt(0)")
                    g.stamp()
        e("s_waitcnt vmcnt(0)")
        g.stamp()
        e("s_endpgm")
    wqseq = load_wq(V_WQ, V_T)
    if cfg.WPOS == 0:
        load_wo(V_WO, V_T)
        load_w13(V_W13, V_T)
        load_w2(V_W2, V_T)
    IB = cfg.IB
    bseq = []

    def batch():
        if len(bseq) >= cfg.IWIN:
            g.wait_vm(bseq[len(bseq) - cfg.IWIN])
        issue_n(IB)
        bseq.append(g.vm - 1)

    for _ in range(cfg.IUP):
        issue_n(IB)
        bseq.append(g.vm - 1)
    g.wait_vm(wqseq)
    e("v_and_b32 v%d, 0xffff0000, v%d" % (V_XR + 1, V_XR))
    e("v_lshlrev_b32 v%d, 16, v%d" % (V_XR, V_XR))
    g.lgkm0()
    e("s_lshl_b32 s%d, s%d, 16" % (S_PIV, S_PIV))
    g.stamp()
    slot = x_to_lds_and_barrier()
    q_stage_compute(slot, V_WQ, V_Y)
    q_pub_addr(0)
    q_publish()
    if cfg.STAMP2: g.stamp()
    q_gather_addr(0, V_T + 4)
    e("v_and_b32 v%d, 7, v%d" % (V_T + 2, V_LANE))
    e("v_lshlrev_b32 v%d, 2, v%d" % (V_T + 2, V_T + 2))
    e("s_lshl_b32 s%d, s%d, 5" % (S_T2, S_KVH))
    e("s_add_u32 s%d, s%d, s%d" % (S_P0, S_T2, S_C))
    e("s_mov_b32 s%d, 0x01010101" % S_R1)
    e("v_mov_b32 v%d, 1" % (V_U + 4))
    e("v_mov_b32 v%d, 0" % (V_U + 5))
    batch()
    mark = g.vm - IB
    batch()
    g.wait_vm(mark)
    wave0_store("buffer_store_byte v%d, v%d, %s, s%d offen sc1" % (V_U + 4, V_U + 5, srd(S_DBG), S_P0), 1)
    for _ in range(cfg.IDLY):
        batch()

    if cfg.NOQ:
        e("s_mov_b32 s%d, 2" % S_STATE)

    def attempt(nb):
        la = g.newlabel("att")
        if nb and len(bseq) >= cfg.IWIN:
            g.wait_vm(bseq[len(bseq) - cfg.IWIN])
        e("s_cmp_eq_u32 s%d, 2" % S_STATE)
        e("s_cbranch_scc1 %s_k" % la)
        e("s_cmp_eq_u32 s%d, 1" % S_STATE)
        e("s_cbranch_scc1 %s_q" % la)
        e("v_mov_b32 v%d, 0" % (V_T + 3))
        g.vmem("buffer_load_dword v%d, v%d, %s, s%d offen sc1" % (V_T + 3, V_T + 2, srd(S_DBG), S_T2), counted=False)
        e("s_branch %s_k" % la)
        g.label(la + "_q")
        for k in range(4):
            e("v_mov_b32 v%d, -1" % (V_Q + k))
        q_gather_issue(V_T + 4)
        g.label(la + "_k")
        if nb:
            issue_n(nb)
            bseq.append(g.vm - 1)
        e("s_cmp_eq_u32 s%d, 2" % S_STATE)
        e("s_cbranch_scc1 %s_n" % la)
        e("s_waitcnt vmcnt(%d)" % nb)
        e("s_cmp_eq_u32 s%d, 1" % S_STATE)
        e("s_cbranch_scc1 %s_cq" % la)
        e("v_cmp_ne_u32 vcc, s%d, v%d" % (S_R1, V_T + 3))
        e("s_cbranch_vccnz %s_n" % la)
        e("s_mov_b32 s%d, 1" % S_STATE)
        e("s_branch %s_n" % la)
        g.label(la + "_cq")
        g.check_sent([V_Q + k for k in range(4)], V_T)
        e("s_cbranch_vccnz %s_n" % la)
        e("s_mov_b32 s%d, 2" % S_STATE)
        g.label(la + "_n")

    while state["issued"] + IB <= NKR:
        attempt(IB)
        if cfg.STAMP2:
            g.stamp()
            e("v_mov_b32 v%d, s%d" % (V_U + 6, S_STATE))
            g.vmem("buffer_store_dword v%d, v%d, %s, s%d offen offset:128" % (V_U + 6, V_U + 7, srd(S_WS), S_T0))
    lab = g.newlabel("fb")
    g.label(lab)
    e("s_cmp_eq_u32 s%d, 2" % S_STATE)
    e("s_cbranch_scc1 %s_done" % lab)
    e("s_sleep 4")
    attempt(0)
    e("s_sub_u32 s%d, s%d, 1" % (S_SPIN, S_SPIN))
    e("s_cmp_gt_i32 s%d, 0" % S_SPIN)
    e("s_cbranch_scc1 %s" % lab)
    g.label(lab + "_done")
    e("v_lshlrev_b32 v%d, 2, v%d" % (V_U + 4, V_LANE))
    e("s_mov_b32 s%d, 0x01010101" % S_STATE)
    g.stamp()

    def clr_issue(counted):
        return g.vmem("buffer_load_dword v%d, v%d, %s, 0 offen sc1" % (V_U + 5, V_U + 4, srd(S_DBG)), counted=counted)

    def clr_check():
        e("v_cmp_ne_u32 vcc, s%d, v%d" % (S_STATE, V_U + 5))

    def clr_wait(seq):
        lab = g.newlabel("clr")
        g.wait_side(seq)
        clr_check()
        e("s_cbranch_vccz %s_ok" % lab)
        g.label(lab)
        e("s_sleep 8")
        clr_issue(False)
        e("s_waitcnt vmcnt(0)")
        clr_check()
        e("s_cbranch_vccz %s_ok" % lab)
        e("s_sub_u32 s%d, s%d, 1" % (S_SPIN, S_SPIN))
        e("s_cmp_gt_i32 s%d, 0" % S_SPIN)
        e("s_cbranch_scc1 %s" % lab)
        g.label(lab + "_ok")

    vres = {}

    def x_gather(off, n, pre):
        regs = [V_O + 2 * k for k in range(4)] + [V_U + 2 * k for k in range(4)]
        e("v_lshlrev_b32 v%d, 3, v0" % (V_T + 4))

        for k in range(0, n, 2):
            e("s_mov_b32 s%d, 0x%x" % (S_XO + k // 2, off + 2048 * k))

        def mk(k):
            return lambda: g.vmem("buffer_load_dwordx2 %s, v%d, %s, s%d offen offset:%d sc1" % (vr(regs[k], 2), V_T + 4, srd(S_WS), S_XO + k // 2, 2048 * (k & 1)), counted=False)
        g.poll([(mk(k), [regs[k], regs[k] + 1]) for k in range(n)], V_T, "xg", pre)
        live = regs[:n]
        while len(live) > 1:
            nxt = []
            for a in range(0, len(live) - 1, 2):
                e("v_pk_add_f32 %s, %s, %s" % (vr(live[a], 2), vr(live[a], 2), vr(live[a + 1], 2)))
                nxt.append(live[a])
            if len(live) % 2:
                nxt.append(live[-1])
            live = nxt
        r = live[0]
        e("v_cvt_pk_bf16_f32 v%d, v%d, v%d" % (V_T, r, r + 1))
        e("v_lshlrev_b32 v%d, 16, v%d" % (r, V_T))
        e("v_and_b32 v%d, 0xffff0000, v%d" % (r + 1, V_T))
        e("v_pk_add_f32 %s, %s, %s" % (vr(V_XR, 2), vr(V_XR, 2), vr(r, 2)))
        e("v_cvt_pk_bf16_f32 v%d, v%d, v%d" % (V_T, V_XR, V_XR + 1))
        e("v_lshlrev_b32 v%d, 16, v%d" % (V_XR, V_T))
        e("v_and_b32 v%d, 0xffff0000, v%d" % (V_XR + 1, V_T))

    def rec_addr_pre(it, va):
        e("v_bfe_u32 v%d, v%d, 2, 2" % (va, V_LANE))
        e("v_lshlrev_b32 v%d, 16, v%d" % (va, va))
        e("v_lshrrev_b32 v%d, 4, v%d" % (va + 1, V_LANE))
        e("v_lshl_add_u32 v%d, v%d, 14, v%d" % (va, va + 1, va))
        e("v_and_b32 v%d, 3, v%d" % (va + 1, V_LANE))
        e("v_lshl_add_u32 v%d, v%d, 4, v%d" % (va, va + 1, va))
        e("s_lshl_b32 s%d, s%d, 18" % (S_P0, S_KVH))
        e("s_lshl_b32 s%d, s%d, 8" % (S_T1, S_C))
        e("s_add_u32 s%d, s%d, s%d" % (S_P0, S_P0, S_T1))
        e("s_lshl_b32 s%d, s%d, 6" % (S_T1, S_WAVE))
        e("s_add_u32 s%d, s%d, s%d" % (S_P0, S_P0, S_T1))
        e("s_add_u32 s%d, s%d, 0x%x" % (S_P0, S_P0, it * ITS + RO))

    def chain(it, W13, W2R, SCR):
        base = it * ITS
        va = V_U + 2
        g.nop(8)
        for k in range(8):
            e("v_min_u32 v%d, -2, v%d" % (V_O + k, V_O + k))
        e("s_add_u32 s%d, s%d, 8192" % (S_T0, S_P0))
        g.vmem("buffer_store_dwordx4 %s, v%d, %s, s%d offen sc1" % (vr(V_O, 4), va, srd(S_WS), S_P0))
        g.vmem("buffer_store_dwordx4 %s, v%d, %s, s%d offen sc1" % (vr(V_O + 4, 4), va, srd(S_WS), S_T0))
        g.stamp()
        if cfg.XEND2 == 1:
            e("s_endpgm")
        if cfg.WPOS == 4 and it == 0:
            load_wo(V_WO, V_T)
            load_w13(V_W13, V_T)
            load_w2(V_W2, V_T)
        if cfg.VBAR:
            e("s_barrier")
        if cfg.WPOS == 3 and it == 0:
            load_wo(V_WO, V_T)
            load_w13(V_W13, V_T)
            load_w2(V_W2, V_T)
        if cfg.WPOS == 5 and it == 0:
            load_w13(V_W13, V_T)
            load_w2(V_W2, V_T)
        lab = g.newlabel("mls")
        e("s_cmp_eq_u32 s%d, 1" % S_MLOK)
        e("s_cbranch_scc1 %s" % lab)
        sv = g.vm_done
        ml_addr(it)
        g.poll([(lambda: g.vmem("buffer_load_dwordx4 %s, v%d, %s, s%d offen sc1" % (vr(V_U, 4), V_T, srd(S_WS), S_R1), counted=False), [V_U + k for k in range(4)]),
                (lambda: g.vmem("buffer_load_dwordx4 %s, v%d, %s, s%d offen sc1" % (vr(V_U + 4, 4), V_T + 1, srd(S_WS), S_R1), counted=False), [V_U + 4 + k for k in range(4)])],
               V_T + 2, "ml")
        ml_compute()
        g.vm_done = sv
        g.label(lab)
        a1_after = None
        if cfg.WPOS == 6 and it == 0:
            def a1_after():
                load_wo(V_WO, V_T + 3)
                load_w13(V_W13, V_T + 3)
                load_w2(V_W2, V_T + 3)
        o0, o1 = SCR, SCR + 4
        e("v_lshrrev_b32 v%d, 2, v%d" % (V_T, V_LANE))
        e("v_lshlrev_b32 v%d, 7, v%d" % (V_T, V_T))
        e("v_and_b32 v%d, 3, v%d" % (V_T + 1, V_LANE))
        e("v_lshlrev_b32 v%d, 4, v%d" % (V_T + 1, V_T + 1))
        e("v_add_u32 v%d, v%d, v%d" % (V_T, V_T, V_T + 1))
        e("s_lshl_b32 s%d, s%d, 5" % (S_R0, S_KVH))
        e("s_add_u32 s%d, s%d, s%d" % (S_R0, S_R0, S_C))
        e("s_lshl_b32 s%d, s%d, 13" % (S_R0, S_R0))
        e("s_lshl_b32 s%d, s%d, 11" % (S_T0, S_WAVE))
        e("s_add_u32 s%d, s%d, s%d" % (S_R0, S_R0, S_T0))
        e("s_add_u32 s%d, s%d, 0x%x" % (S_R0, S_R0, base + RO))
        e("s_lshl_b32 s%d, s%d, 13" % (S_P0, S_KVH))
        e("s_add_u32 s%d, s%d, s%d" % (S_P0, S_P0, S_T0))
        e("s_lshl_b32 s%d, s%d, 6" % (S_T1, S_C))
        e("s_add_u32 s%d, s%d, s%d" % (S_P0, S_P0, S_T1))
        e("s_add_u32 s%d, s%d, 0x%x" % (S_P0, S_P0, base + OB))

        g.poll([(lambda: g.vmem("buffer_load_dwordx4 %s, v%d, %s, s%d offen sc1" % (vr(o0, 4), V_T, srd(S_WS), S_R0), counted=False), [o0 + i for i in range(4)]),
                (lambda: g.vmem("buffer_load_dwordx4 %s, v%d, %s, s%d offen offset:64 sc1" % (vr(o1, 4), V_T, srd(S_WS), S_R0), counted=False), [o1 + i for i in range(4)])],
               V_T + 2, "a1", cfg.P_A1, a1_after)
        for k in range(4):
            e("v_mul_f32 v%d, v%d, v%d" % (o0 + k, V_U, o0 + k))
        for k in range(4):
            e("v_fmac_f32 v%d, v%d, v%d" % (o0 + k, V_U + 1, o1 + k))
        g.ror_red([o0 + k for k in range(4)], [8, 4], "v_add_f32")
        for k in range(4):
            e("v_mov_b32 v%d, v%d" % (o1 + k, o0 + k))
        for k in range(4):
            e("v_permlane32_swap_b32 v%d, v%d" % (o0 + k, o1 + k))
        for k in range(4):
            e("v_add_f32 v%d, v%d, v%d" % (o0 + k, o0 + k, o1 + k))
        for k in range(4):
            e("v_mov_b32 v%d, v%d" % (o1 + k, o0 + k))
        for k in range(4):
            e("v_permlane16_swap_b32 v%d, v%d" % (o0 + k, o1 + k))
        for k in range(4):
            e("v_add_f32 v%d, v%d, v%d" % (o0 + k, o0 + k, o1 + k))
        for k in range(4):
            e("v_min_u32 v%d, -2, v%d" % (o0 + k, o0 + k))
        g.exec_lanes(4)
        g.vmem("buffer_store_dwordx4 %s, v%d, %s, s%d offen sc1" % (vr(o0, 4), V_T + 1, srd(S_WS), S_P0))
        g.exec_all()
        g.stamp()
        if cfg.XEND2 == 2:
            e("s_endpgm")

        og = [V_O, V_O + 4, V_U, V_U + 4]
        e("v_lshrrev_b32 v%d, 1, v%d" % (V_T + 4, V_LANE))
        e("v_lshlrev_b32 v%d, 4, v%d" % (V_T + 4, V_T + 4))
        e("s_lshl_b32 s%d, s%d, 13" % (S_R0, S_KVH))
        e("s_lshl_b32 s%d, s%d, 9" % (S_T1, S_WAVE))
        e("s_add_u32 s%d, s%d, s%d" % (S_R0, S_R0, S_T1))
        e("s_add_u32 s%d, s%d, 0x%x" % (S_R0, S_R0, base + OB))
        e("s_add_u32 s%d, s%d, 4096" % (S_R1, S_R0))
        g.red_addr(V_T + 2, V_T + 3)
        e("v_and_b32 v%d, 7, v%d" % (V_T + 3, V_LANE))
        e("v_lshlrev_b32 v%d, 3, v%d" % (V_T + 3, V_T + 3))
        e("s_lshl_b32 s%d, s%d, 11" % (S_P0, S_KVH))
        e("s_lshl_b32 s%d, s%d, 6" % (S_T1, S_C))
        e("s_add_u32 s%d, s%d, s%d" % (S_P0, S_P0, S_T1))
        e("s_add_u32 s%d, s%d, 0x%x" % (S_P0, S_P0, base + P1))

        def mkob(v):
            return lambda: g.vmem("buffer_load_dwordx4 %s, v%d, %s, s%d offen offset:%d sc1" % (vr(og[v], 4), V_T + 4, srd(S_WS), S_R0 if v < 2 else S_R1, 2048 * (v & 1)), counted=False)
        g.poll([(mkob(v), [og[v] + i for i in range(4)]) for v in range(4)], V_T, "ob", cfg.P_OB)
        for k in (0, 2):
            e("v_pk_add_f32 %s, %s, %s" % (vr(og[0] + k, 2), vr(og[0] + k, 2), vr(og[1] + k, 2)))
            e("v_pk_add_f32 %s, %s, %s" % (vr(og[2] + k, 2), vr(og[2] + k, 2), vr(og[3] + k, 2)))
        for k in (0, 2):
            e("v_pk_add_f32 %s, %s, %s" % (vr(og[0] + k, 2), vr(og[0] + k, 2), vr(og[2] + k, 2)))
        xo = V_B
        for k in (0, 2):
            e("v_cvt_pk_bf16_f32 v%d, v%d, v%d" % (V_T, og[0] + k, og[0] + k + 1))
            e("v_lshlrev_b32 v%d, 16, v%d" % (xo + k, V_T))
            e("v_and_b32 v%d, 0xffff0000, v%d" % (xo + k + 1, V_T))
        acc = V_O
        g.gemv8([V_WO + 4 * i for i in range(4)], [xo + i for i in range(4)], V_U, acc)
        g.reduce8_to_lds(acc, V_T + 2, L_RED + 256)
        g.sum4_pairs(V_U, V_O, V_T + 3, L_RED + 256)
        e("v_min_u32 v%d, -2, v%d" % (V_U, V_U))
        e("v_min_u32 v%d, -2, v%d" % (V_U + 1, V_U + 1))
        wave0_store("buffer_store_dwordx2 %s, v%d, %s, s%d offen sc1" % (vr(V_U, 2), V_T + 3, srd(S_WS), S_P0), 8)
        if it == 0:
            lab = g.newlabel("clr1")
            e("s_cmp_ge_u32 s2, 224")
            e("s_cbranch_scc1 %s" % lab)
            for k in range(4):
                e("v_mov_b32 v%d, -1" % (SCR + k))
            e("v_lshlrev_b32 v%d, 4, v0" % (SCR + 4))
            e("s_mul_i32 s%d, s2, 12288" % S_T0)
            e("s_add_u32 s%d, s%d, 0x%x" % (S_T0, S_T0, ITS))
            for k in range(3):
                g.vmem("buffer_store_dwordx4 %s, v%d, %s, s%d offen sc1" % (vr(SCR, 4), SCR + 4, srd(S_WS), S_T0), counted=False)
                if k < 2:
                    e("s_add_u32 s%d, s%d, 4096" % (S_T0, S_T0))
            g.label(lab)
        g.stamp()
        if cfg.XEND2 == 3:
            e("s_endpgm")

        x_gather(base + P1, 8, cfg.P_X1)
        slot = x_to_lds_and_barrier()
        if it == 0 and cfg.PF:
            sv_we = st.we
            st.we = 0
            for u in range(127 - NVR - cfg.PF + 1, 127 - NVR + 1):
                g.throttle(1)
                st.load("V", u, Tile("v", V_Q), "")
            st.we = sv_we
        g.stamp()
        mine, t = V_B, V_U
        accg, accu = SCR, V_O
        e("v_and_b32 v%d, 15, v%d" % (V_T, V_LANE))
        e("v_lshlrev_b32 v%d, 3, v%d" % (V_T, V_T))
        e("ds_read_b64 %s, v%d offset:%d" % (vr(t, 2), V_T, L_ST + 128 * slot))
        e("v_lshrrev_b32 v%d, 2, v%d" % (V_T + 1, V_LANE))
        e("v_lshlrev_b32 v%d, 3, v%d" % (V_T + 1, V_T + 1))
        e("s_lshl_b32 s%d, s%d, 2" % (S_T0, S_KQ))
        e("s_add_u32 s%d, s%d, s%d" % (S_T0, S_T0, S_WAVE))
        e("s_lshl_b32 s%d, s%d, 7" % (S_T0, S_T0))
        e("v_add_u32 v%d, s%d, v%d" % (V_T + 1, S_T0, V_T + 1))
        e("ds_read_b64 %s, v%d offset:%d" % (vr(mine, 2), V_T + 1, L_XL))
        e("v_lshrrev_b32 v%d, 5, v%d" % (V_T + 2, V_LANE))
        e("v_lshlrev_b32 v%d, 7, v%d" % (V_T + 2, V_T + 2))
        e("v_and_b32 v%d, 3, v%d" % (V_T + 3, V_LANE))
        e("v_lshl_add_u32 v%d, v%d, 5, v%d" % (V_T + 2, V_T + 3, V_T + 2))
        e("v_bfe_u32 v%d, v%d, 4, 1" % (V_T + 3, V_LANE))
        e("v_lshl_add_u32 v%d, v%d, 4, v%d" % (V_T + 2, V_T + 3, V_T + 2))
        e("s_lshl_b32 s%d, s%d, 8" % (S_T0, S_WAVE))
        e("v_add_u32 v%d, s%d, v%d" % (V_T + 2, S_T0, V_T + 2))
        e("v_and_b32 v%d, 1, v%d" % (V_T + 3, V_LANE))
        e("v_lshlrev_b32 v%d, 7, v%d" % (V_T + 3, V_T + 3))
        e("v_lshrrev_b32 v%d, 1, v%d" % (V_T + 4, V_LANE))
        e("v_lshl_add_u32 v%d, v%d, 2, v%d" % (V_T + 3, V_T + 4, V_T + 3))
        e("v_lshlrev_b32 v%d, 2, v%d" % (V_T + 4, V_LANE))
        e("s_mul_i32 s%d, s%d, 14336" % (S_P0, S_KQ))
        e("s_lshl_b32 s%d, s%d, 8" % (S_T0, S_CB))
        e("s_add_u32 s%d, s%d, s%d" % (S_P0, S_P0, S_T0))
        e("s_add_u32 s%d, s%d, 0x%x" % (S_P0, S_P0, base + GU))
        g.lgkm0()
        ln_finish(slot, mine, 2, t)
        g.gemv8([W13, W13 + 4], [mine, mine + 1], V_B + 2, accg)
        g.gemv8([W13 + 8, W13 + 12], [mine, mine + 1], V_B + 2, accu)
        g.nop(3)
        for j in range(8):
            e("v_permlane32_swap_b32 v%d, v%d" % (accg + j, accu + j))
        for j in range(0, 8, 2):
            e("v_pk_add_f32 %s, %s, %s" % (vr(accg + j, 2), vr(accg + j, 2), vr(accu + j, 2)))
        g.nop(1)
        for j in range(4):
            e("v_permlane16_swap_b32 v%d, v%d" % (accg + j, accg + j + 4))
        g.nop(1)
        for j in range(0, 4, 2):
            e("v_pk_add_f32 %s, %s, %s" % (vr(accg + j, 2), vr(accg + j, 2), vr(accg + j + 4, 2)))
        g.nop(1)
        g.ror_red([accg + j for j in range(4)], [8, 4], "v_add_f32")
        e("ds_write_b128 v%d, %s offset:%d" % (V_T + 2, vr(accg, 4), L_GU))
        g.lgkm0()
        e("s_barrier")
        for w in range(4):
            e("ds_read_b32 v%d, v%d offset:%d" % (V_O + w, V_T + 3, L_GU + 256 * w))
        g.lgkm0()
        e("v_pk_add_f32 %s, %s, %s" % (vr(V_O, 2), vr(V_O, 2), vr(V_O + 2, 2)))
        e("v_add_f32 v%d, v%d, v%d" % (V_O, V_O, V_O + 1))
        e("v_min_u32 v%d, -2, v%d" % (V_O, V_O))
        wave0_store("buffer_store_dword v%d, v%d, %s, s%d offen sc1" % (V_O, V_T + 4, srd(S_WS), S_P0), 64,
                    "s_cmp_ge_u32 s%d, 28" % S_C)
        g.stamp()

        hg, acc = V_B, V_O
        gu = [SCR, SCR + 4, V_U, V_U + 4]
        e("v_lshrrev_b32 v%d, 1, v%d" % (V_T + 4, V_LANE))
        e("v_lshlrev_b32 v%d, 4, v%d" % (V_T + 4, V_T + 4))
        e("s_lshl_b32 s%d, s%d, 11" % (S_R0, S_KSG))
        e("s_lshl_b32 s%d, s%d, 9" % (S_T1, S_WAVE))
        e("s_add_u32 s%d, s%d, s%d" % (S_R0, S_R0, S_T1))
        e("s_add_u32 s%d, s%d, 0x%x" % (S_XO, S_R0, base + GU))
        for k in range(1, 4):
            e("s_add_u32 s%d, s%d, 14336" % (S_XO + k, S_XO + k - 1))
        g.red_addr(V_T + 2, V_T + 3)
        e("v_and_b32 v%d, 7, v%d" % (V_T + 3, V_LANE))
        e("v_lshlrev_b32 v%d, 3, v%d" % (V_T + 3, V_T + 3))
        e("s_lshl_b32 s%d, s%d, 11" % (S_P0, S_KS))
        e("s_lshl_b32 s%d, s%d, 6" % (S_T1, S_CN))
        e("s_add_u32 s%d, s%d, s%d" % (S_P0, S_P0, S_T1))
        e("s_add_u32 s%d, s%d, 0x%x" % (S_P0, S_P0, base + P2))

        def mkgu(k):
            return lambda: g.vmem("buffer_load_dwordx4 %s, v%d, %s, s%d offen sc1" % (vr(gu[k], 4), V_T + 4, srd(S_WS), S_XO + k), counted=False)
        g.poll([(mkgu(k), [gu[k] + i for i in range(4)]) for k in range(4)], V_T, "hb", cfg.P_GU)
        for k in (0, 2):
            e("v_pk_add_f32 %s, %s, %s" % (vr(gu[0] + k, 2), vr(gu[0] + k, 2), vr(gu[1] + k, 2)))
            e("v_pk_add_f32 %s, %s, %s" % (vr(gu[2] + k, 2), vr(gu[2] + k, 2), vr(gu[3] + k, 2)))
        for k in (0, 2):
            e("v_pk_add_f32 %s, %s, %s" % (vr(gu[0] + k, 2), vr(gu[0] + k, 2), vr(gu[2] + k, 2)))
        G0, U0, G1, U1, ta, tb = SCR, SCR + 1, SCR + 2, SCR + 3, V_U, V_U + 1
        e("v_cvt_pk_bf16_f32 v%d, v%d, v%d" % (ta, G0, U0))
        e("v_cvt_pk_bf16_f32 v%d, v%d, v%d" % (tb, G1, U1))
        e("v_lshlrev_b32 v%d, 16, v%d" % (G0, ta))
        e("v_lshlrev_b32 v%d, 16, v%d" % (G1, tb))
        e("v_and_b32 v%d, 0xffff0000, v%d" % (U0, ta))
        e("v_and_b32 v%d, 0xffff0000, v%d" % (U1, tb))
        e("v_mul_f32 v%d, 0x%x, v%d" % (ta, f32bits(-LOG2E), G0))
        e("v_mul_f32 v%d, 0x%x, v%d" % (tb, f32bits(-LOG2E), G1))
        e("v_exp_f32 v%d, v%d" % (ta, ta))
        e("v_exp_f32 v%d, v%d" % (tb, tb))
        g.nop(1)
        e("v_add_f32 v%d, 1.0, v%d" % (ta, ta))
        e("v_add_f32 v%d, 1.0, v%d" % (tb, tb))
        e("v_rcp_f32 v%d, v%d" % (ta, ta))
        e("v_rcp_f32 v%d, v%d" % (tb, tb))
        g.nop(1)
        e("v_mul_f32 v%d, v%d, v%d" % (G0, G0, ta))
        e("v_mul_f32 v%d, v%d, v%d" % (G1, G1, tb))
        e("v_cvt_pk_bf16_f32 v%d, v%d, v%d" % (ta, G0, G1))
        e("v_lshlrev_b32 v%d, 16, v%d" % (G0, ta))
        e("v_and_b32 v%d, 0xffff0000, v%d" % (G1, ta))
        e("v_mul_f32 v%d, v%d, v%d" % (G0, G0, U0))
        e("v_mul_f32 v%d, v%d, v%d" % (G1, G1, U1))
        e("v_cvt_pk_bf16_f32 v%d, v%d, v%d" % (ta, G0, G1))
        e("v_lshlrev_b32 v%d, 16, v%d" % (hg, ta))
        e("v_and_b32 v%d, 0xffff0000, v%d" % (hg + 1, ta))
        g.gemv8([W2R, W2R + 4], [hg, hg + 1], V_B + 2, acc)
        g.reduce8_to_lds(acc, V_T + 2, L_RED + 512)
        g.sum4_pairs(V_U, V_O, V_T + 3, L_RED + 512)
        e("v_min_u32 v%d, -2, v%d" % (V_U, V_U))
        e("v_min_u32 v%d, -2, v%d" % (V_U + 1, V_U + 1))
        wave0_store("buffer_store_dwordx2 %s, v%d, %s, s%d offen sc1" % (vr(V_U, 2), V_T + 3, srd(S_WS), S_P0), 8,
                    "s_cmp_ge_u32 s%d, 7" % S_KS)
        g.stamp()

    LAG = 2
    wpieces = []
    if cfg.WPOS == 2:
        keepL, keepvm, keepdone = g.L, g.vm, g.vm_done
        g.L, g.vm, g.vm_done = [], 0, 0
        load_wo(V_WO, V_T)
        load_w13(V_W13, V_T)
        load_w2(V_W2, V_T)
        cur = []
        for ln in g.L:
            cur.append(ln)
            if "buffer_load" in ln:
                wpieces.append(cur)
                cur = []
        assert not cur and len(wpieces) == 10
        g.L, g.vm, g.vm_done = keepL, keepvm, keepdone
    for t in range(128 + LAG):
        if t < 128:
            issue_upto(cfg.DEPTH1)
            g.wait_vm(seqs[t])
            tile, _k = dest[t]
            qk_mfma(t, tile, t)
            if t < NKL and not cfg.XNODS:
                e("ds_write_b128 v%d, %s offset:%d" % (V_LT, tile.r(), t * 1024))
            consumed(t)
            if cfg.WPOS == 5 and t == 8: load_wo(V_WO, V_T)
            if cfg.WPOS == 1:
                if t == 8: load_wo(V_WO, V_T)
                if t == 20: load_w13(V_W13, V_T)
                if t == 32: load_w2(V_W2, V_T)
            if cfg.WPOS == 2 and t >= cfg.W0 and (t - cfg.W0) % cfg.WSP == 0 and wpieces:
                g.throttle(1)
                for ln in wpieces.pop(0):
                    g.L.append(ln)
                g.vm += 1
            if t == 100:
                e("v_mov_b32 v%d, 0" % (V_U + 5))
                clrq = g.vm
                clr_issue(False)
            if t == 116:
                clr_wait(clrq)
                if not cfg.STAMP:
                    pool.extend(utiles)
                else:
                    pool.append(utiles[0])
            issue_upto(cfg.DEPTH1)
        else:
            g.nop(4)
        if t - LAG >= 0:
            qk_adds(t - LAG, t - LAG)
        else:
            g.nop(3)
    for x in dtiles:
        release(x)
    issue_upto(cfg.DEPTH1)
    g.stamp()
    softmax(0)
    g.lgkm0()
    g.stamp()

    def v_side_jobs(n, it, jobs):
        if n == 104:
            ml_addr(it)
            for k in range(8):
                e("v_mov_b32 v%d, -1" % (V_U + k))
            jobs["ml"] = g.vm
            ml_issue(False)
        if n == 120:
            ml_try_check(jobs["ml"])
            rec_addr_pre(it, V_U + 2)

    jobs = {}
    pv_b(0, 0)
    for u in range(128):
        i = 128 + u
        if u + 1 < 128:
            pv_b(u + 1, (u + 1) & 1)
        else:
            g.nop(2)
        g.wait_vm(seqs[i])
        tile, _k = dest[i]
        pv_mfma(tile, u & 1)
        if u == 40:
            for x in utiles:
                retire.add(id(x))
            pool[:] = [x for x in pool if id(x) not in retire]
        consumed(i)
        if u % 16 == 15 and u < 112:
            release(ytiles[u // 16])
        issue_upto(cfg.DEPTH1V)
        vres[u] = tile
        if u == 104:
            assert all(id(dest[j][0]) not in retire for j in range(i + 1, state["issued"]))
        v_side_jobs(u, 0, jobs)
    g.stamp()
    if cfg.XEND:
        g.stamp()
        e("s_endpgm")
    pfn = [127 - NVR - cfg.PF0]

    def shadow(name):
        if name in ("a1", "q1") or not cfg.PFS:
            return
        sv_we = st.we
        st.we = 0
        for _ in range(cfg.PFS):
            st.load("V", pfn[0], Tile("v", V_Q), "")
            pfn[0] -= 1
        st.we = sv_we
    g.shadow = shadow
    chain(0, V_W13, V_W2, V_Y)

    x_gather(P2, 7, cfg.P_X2)
    slot = x_to_lds_and_barrier()
    q_stage_compute(slot, V_WQ, V_Y)
    q_pub_addr(1)
    q_publish()
    q_gather_addr(1, V_T + 4)
    g.poll([(lambda: q_gather_issue(V_T + 4), [V_Q + i for i in range(4)])], V_T, "q1", cfg.P_Q)
    g.stamp()

    st.we = cfg.WE2
    st.p1 = False
    st.wo = cfg.WO2
    g.shadow = None
    resident_v = list(range(127, 127 - NVR, -1))
    vloads = list(range(127 - NVR, -1, -1))
    free, vd, vs = [], {}, {}
    st2 = {"issued": 0, "consumed": 0}

    def issue2(maxn=1000):
        while maxn > 0 and st2["issued"] < len(vloads) and free and st2["issued"] - st2["consumed"] < cfg.DEPTH2:
            maxn -= 1
            u = vloads[st2["issued"]]
            tile = free.pop(0)
            g.throttle(1)
            vs[u] = st.load("V", u, tile, "" if u >= cfg.VDEF else cfg.FV2)
            vd[u] = tile
            st2["issued"] += 1
    NLR = 4
    korder = list(range(112, 128)) + list(range(NKL, 112)) + list(range(NKL))
    if cfg.PARK:
        dring[0] = [V_U, V_O, V_U + 4, V_O + 4]
    ldsring = [kslot(t) for t in korder[:NLR]]
    lds_issued = 0
    for n in range(128 + LAG):
        if n < 128:
            t = korder[n]
            if n < NKR:
                tile = kslot(t)
                qk_mfma(t, tile, n)
                if n >= NLR:
                    parked = [u for u in resident_v if any(vres[u] is y for y in ytiles)]
                    if parked:
                        u = parked[0]
                        src = vres[u]
                        for k in range(4):
                            if tile.kind == "a":
                                e("v_accvgpr_write_b32 a%d, v%d" % (tile.base + k, src.base + k))
                            else:
                                e("v_mov_b32 v%d, v%d" % (tile.base + k, src.base + k))
                        vres[u] = tile
                    else:
                        free.append(tile)
                    if n < cfg.KL0 or n % cfg.KLD == 0:
                        issue2(1)
                if n == NLR + 2:
                    for k in range(min(NLR, NKL)):
                        e("ds_read_b128 %s, v%d offset:%d" % (ldsring[k].r(), V_LT, k * 1024))
                    lds_issued = min(NLR, NKL)
            else:
                k = n - NKR
                tile = ldsring[k % NLR]
                e("s_waitcnt lgkmcnt(%d)" % (lds_issued - k - 1))
                qk_mfma(t, tile, n)
                if lds_issued < NKL:
                    e("ds_read_b128 %s, v%d offset:%d" % (tile.r(), V_LT, lds_issued * 1024))
                    lds_issued += 1
                if n % cfg.KLD == 0:
                    issue2(1)
        else:
            g.nop(4)
        if n - LAG >= 0:
            qk_adds(korder[n - LAG], n - LAG)
        else:
            g.nop(3)
    free += ldsring
    issue2(cfg.SML)
    g.stamp()
    softmax(1, lambda: issue2(1))
    g.lgkm0()
    g.stamp()
    order = resident_v + vloads
    jobs = {}
    pv_b(order[0], 0)
    for n, u in enumerate(order):
        if n + 1 < 128:
            pv_b(order[n + 1], (n + 1) & 1)
        else:
            g.nop(2)
        if u in vs:
            g.wait_vm(vs[u])
            tile = vd[u]
            st2["consumed"] += 1
        else:
            tile = vres[u]
        pv_mfma(tile, n & 1)
        free.append(tile)
        issue2()
        v_side_jobs(n, 1, jobs)
    g.stamp()
    chain(1, V_W13, V_W2, V_Y)

    e("s_cmp_lg_u32 s2, 0")
    e("s_cbranch_scc1 L_end")
    x_gather(ITS + P2, 7, cfg.P_XF)
    e("v_lshlrev_b32 v%d, 2, v0" % (V_T + 1))
    g.vmem("buffer_store_dword v%d, v%d, %s, 0 offen" % (V_T, V_T + 1, srd(S_OUT)))
    g.stamp()
    if cfg.DSTAMP:
        sel = [1, 2, 3, 4, 6, 7, 8, 10, 11, 12, 14, 16, 17, 18, 20, 21]
        e("v_mov_b32 v%d, 0" % (V_T + 1))
        for k, i in enumerate(sel):
            e("v_readlane_b32 s%d, v%d, %d" % (S_T0, V_DS, i))
            e("v_readlane_b32 s%d, v%d, 0" % (S_T1, V_DS))
            e("s_nop 3")
            e("s_sub_u32 s%d, s%d, s%d" % (S_T0, S_T0, S_T1))
            e("v_mov_b32 v%d, s%d" % (V_T, S_T0))
            e("s_cmp_lg_u32 s%d, 0" % S_WAVE)
            e("s_cbranch_scc1 L_ds%d" % k)
            e("buffer_store_dword v%d, v%d, %s, 0 offen offset:%d" % (V_T, V_T + 1, srd(S_DBG), 4 * k))
            g.label("L_ds%d" % k)
    if cfg.XDE:
        if cfg.XENC >= 0:
            e("v_readlane_b32 s72, v%d, %d" % (V_DS, cfg.XENC))
            e("s_nop 3")
        else:
            e("s_memrealtime s[72:73]")
            g.lgkm0()
        e("s_add_u32 s74, s72, %d" % (cfg.XDE * 100))
        g.label("L_xde")
        e("s_memrealtime s[76:77]")
        g.lgkm0()
        e("s_sub_u32 s78, s74, s76")
        e("s_cmp_gt_i32 s78, 0")
        e("s_cbranch_scc1 L_xde")
    g.label("L_end")
    e("s_endpgm")

    out.append("\n".join(g.L))
    out.append('.section .rodata,"a"\n.p2align 6\n.amdhsa_kernel %s' % KNAME)
    out.append("  .amdhsa_next_free_vgpr 512\n  .amdhsa_next_free_sgpr 102\n  .amdhsa_accum_offset 256\n"
               "  .amdhsa_group_segment_fixed_size 0\n  .amdhsa_kernarg_size 96\n  .amdhsa_user_sgpr_count 2\n"
               "  .amdhsa_user_sgpr_kernarg_segment_ptr 1\n  .amdhsa_system_sgpr_workgroup_id_x 1\n.end_amdhsa_kernel")
    return "\n".join(out) + "\n"


if __name__ == "__main__":
    cfg = Cfg()
    outp = "interleave_layers__gqa_block_cached__glu_gated_swiglu__decode.s"
    for a in sys.argv[1:]:
        if a.startswith("out="):
            outp = a[4:]
            continue
        k, v = a.split("=", 1)
        cur = getattr(cfg, k)
        if isinstance(cur, bool):
            v = v in ("1", "True", "true")
        elif isinstance(cur, int):
            v = int(v)
        setattr(cfg, k, v)
    s = generate(cfg)
    open(outp, "w").write(s)
    print("wrote", outp, len(s), "bytes", s.count("\n"), "lines")
```

```python
import sys, math, struct
from gen import HEADER, KNAME, f32bits, srd, vr, Tile, SCALE, LOG2E


class Cfg:
    NW = 144
    NL = 39
    DEPTH1 = 56
    DEPTH2 = 56
    DEPTH1V = 24
    FK1 = "nt"
    FV1 = "nt"
    FV2 = "nt"
    FW = ""
    STAMP = False
    STAMP2 = False
    SPIN = 2000000
    PRE = 14
    BK = 0
    IB = 8
    INA = 9
    IWIN = 3
    NOQ = False
    CLRI = 2
    CLRW = 35
    LWARM = False
    LSTAMP = False
    LOC = True
    NLOC = 40
    HDONE = 60
    XPL = False
    DYN = True
    DTH = -8
    DCN = 22
    DCG = 0
    DYN2 = False
    DEND2 = 108
    DSTEP = 8
    DEND = 232
    WS = 35
    VMOD = 0
    VMN = 1
    PFS = 0
    PF0 = 22
    W0 = 4
    WSP = 8
    WON = 0
    WOFF = 128
    WOFF2 = 0
    PF = 0
    XDS = 0
    XDE = 0
    XENC = -1
    IFIRST = 6
    P_A1 = 2
    P_OB = 14
    P_X1 = 16
    P_GU = 16
    P_X2 = 16
    P_Q = 14
    P_XF = 14
    PARK = True
    PGAP = 0
    KLD = 1
    KL0 = 0
    SML = 1000
    WO = 55
    WE = 50
    WE2 = 50
    WO2 = 0
    KX = 0
    WPOS = 1
    DSTAMP = False
    VDEF = 0
    XW = ""
    XEND = False
    XEND2 = 0
    VBAR = True
    XNOW = False
    XNOSM = False
    XNODS = False
    XNOQK = False
    XNOPV = False
    XNOPVB = False
    NOCLR = False
    IUP = 3
    IDLY = 3


ITS = 0x280000
QB, OB, P1, QBL, P2, RML, RO = 0x0, 0x2000, 0x12000, 0x16000, 0x18000, 0x1C000, 0x48000
OBL = 0x38000
STAMP_OFF = 0x800000
QB0 = 0x600000
PRG = 0x34000
GU = 0x24000
L_XL = 0
L_RED = 2048
L_ST = 2816
L_GU = 3072
L_TILES = 4096

S_K, S_V, S_WQ, S_WO, S_W1, S_W3, S_W2, S_X, S_OUT, S_DBG, S_WS = [8 + 4 * i for i in range(11)]
S_WAVE, S_KVH, S_C, S_T0, S_T1, S_T2, S_SPIN, S_SOFF = 52, 53, 54, 55, 56, 57, 58, 59
S_EX = 60
S_CB, S_KS, S_CN = 62, 63, 64
S_R0, S_R1 = 65, 66
S_STATE = 67
S_STAMP = 68
S_PIV = 70
S_KSG = 71
S_SC = 96
S_P0 = 97
S_MLOK = 98
S_XCC = 99
S_KQ = 100
S_PRL = 92
S_PRS = 93
S_LOC = 95
S_HI = 94
S_PRG = 101
S_XO = 72
S_PM = 76

V_TID, V_LANE, V_KOFF, V_VOFF = 0, 1, 2, 3
V_Q = 4
V_O = 8
V_B = 16
V_M0, V_M1 = 20, 21
V_XR = 22
V_BP = 24
V_LT = 25
V_T = 26
V_Y = 32
V_D = 64
V_U = 80
V_DS = 23 + 0 if False else 3 * 0 + 255
V_WQ = 88
V_WO = 104
V_W13 = 120
V_W2 = 136


class G:
    def __init__(self, cfg):
        self.cfg = cfg
        self.L = []
        self.vm = 0
        self.vm_done = 0
        self.nlabel = 0
        self.nstamp = 0
        self.shadow = None

    def e(self, s):
        self.L.append("  " + s)

    def label(self, name):
        self.L.append(name + ":")

    def newlabel(self, p):
        self.nlabel += 1
        return "L_%s_%d" % (p, self.nlabel)

    def vmem(self, s, counted=True):
        self.e(s)
        if counted:
            self.vm += 1
            return self.vm - 1
        return None

    def wait_vm(self, seq):
        if seq < self.vm_done:
            return
        n = self.vm - seq - 1
        assert n <= 63, n
        self.e("s_waitcnt vmcnt(%d)" % n)
        self.vm_done = seq + 1

    def wait_side(self, pos):
        self.e("s_waitcnt vmcnt(%d)" % (self.vm - pos))

    def throttle(self, more, cap=56):
        if self.vm - self.vm_done + more > cap:
            self.wait_vm(self.vm + more - cap - 1)

    def lgkm0(self):
        self.e("s_waitcnt lgkmcnt(0)")

    def nop(self, n):
        while n > 0:
            k = min(n, 16)
            self.e("s_nop %d" % (k - 1))
            n -= k

    def stamp(self):
        if self.cfg.DSTAMP or self.cfg.LSTAMP:
            i = self.nstamp
            self.nstamp += 1
            if i < 23:
                if i: self.e("s_memrealtime s[%d:%d]" % (S_STAMP, S_STAMP + 1))
                self.lgkm0()
                self.e("v_writelane_b32 v%d, s%d, %d" % (V_DS, S_STAMP, i))
            return
        if not self.cfg.STAMP:
            return
        i = self.nstamp
        self.nstamp += 1
        if i: self.e("s_memrealtime s[%d:%d]" % (S_STAMP, S_STAMP + 1))
        self.lgkm0()
        self.e("v_mov_b32 v%d, s%d" % (V_U + 6, S_STAMP))
        self.e("s_lshl_b32 s%d, s2, 10" % S_T0)
        self.e("s_lshl_b32 s%d, s%d, 8" % (S_T1, S_WAVE))
        self.e("s_add_u32 s%d, s%d, s%d" % (S_T0, S_T0, S_T1))
        self.e("s_add_u32 s%d, s%d, 0x%x" % (S_T0, S_T0, STAMP_OFF + 4 * i))
        self.e("v_mov_b32 v%d, 0" % (V_U + 7))
        self.vmem("buffer_store_dword v%d, v%d, %s, s%d offen" % (V_U + 6, V_U + 7, srd(S_WS), S_T0), counted=False)

    def bf16r(self, x, t):
        self.e("v_cvt_pk_bf16_f32 v%d, v%d, v%d" % (t, x, x))
        self.e("v_lshlrev_b32 v%d, 16, v%d" % (x, t))

    def check_sent(self, regs, tmp):
        regs = list(regs)
        if len(regs) == 1:
            m = regs[0]
        else:
            if len(regs) >= 3:
                self.e("v_max3_u32 v%d, v%d, v%d, v%d" % (tmp, regs[0], regs[1], regs[2]))
                i = 3
            else:
                self.e("v_max_u32 v%d, v%d, v%d" % (tmp, regs[0], regs[1]))
                i = 2
            while i < len(regs):
                if len(regs) - i >= 2:
                    self.e("v_max3_u32 v%d, v%d, v%d, v%d" % (tmp, tmp, regs[i], regs[i + 1]))
                    i += 2
                else:
                    self.e("v_max_u32 v%d, v%d, v%d" % (tmp, tmp, regs[i]))
                    i += 1
            m = tmp
        self.e("v_cmp_eq_u32 vcc, -1, v%d" % m)

    def poll(self, loads, tmp, name, pre=0, after=None, local=None, deferred=None):
        lab = self.newlabel(name)
        ok = lab + "_ok"
        if local is not None:
            self.e("s_cmp_eq_u32 s%d, 0" % S_LOC)
            self.e("s_cbranch_scc1 %s_g" % lab)
            self.e("s_mov_b32 s%d, %d" % (S_T2, self.cfg.NLOC))
            self.label(lab + "_l")
            for fn in local:
                fn()
            self.e("s_waitcnt vmcnt(0)")
            self.check_sent([r for _, regs in loads for r in regs], tmp)
            self.e("s_cbranch_vccz %s_lok" % lab)
            self.e("s_sub_u32 s%d, s%d, 1" % (S_T2, S_T2))
            self.e("s_cmp_gt_i32 s%d, 0" % S_T2)
            self.e("s_cbranch_scc1 %s_l" % lab)
            self.label(lab + "_g")
            deferred()
        if self.shadow is not None and pre:
            self.shadow(name)
        if pre:
            self.e("s_sleep %d" % pre)
        if after is not None:
            for _, regs in loads:
                for r in regs:
                    self.e("v_mov_b32 v%d, -1" % r)
        for fn, regs in loads:
            fn()
        if after is not None:
            pos = self.vm
            after()
            self.wait_side(pos)
        else:
            self.e("s_waitcnt vmcnt(0)")
        self.check_sent([r for _, regs in loads for r in regs], tmp)
        self.e("s_cbranch_vccz %s" % ok)
        n = len(loads)
        M = [S_PM + 2 * j for j in range(n)]
        for j in range(n):
            self.e("s_mov_b64 s[%d:%d], -1" % (M[j], M[j] + 1))
        self.label(lab)
        for j, (fn, regs) in enumerate(loads):
            self.e("s_mov_b64 exec, s[%d:%d]" % (M[j], M[j] + 1))
            self.e("s_cbranch_execz %s_c%d" % (lab, j))
            self.check_sent(regs, tmp)
            self.e("s_mov_b64 s[%d:%d], vcc" % (M[j], M[j] + 1))
            self.label("%s_c%d" % (lab, j))
        self.e("s_mov_b64 s[%d:%d], s[%d:%d]" % (S_EX, S_EX + 1, M[0], M[0] + 1))
        for j in range(1, n):
            self.e("s_or_b64 s[%d:%d], s[%d:%d], s[%d:%d]" % (S_EX, S_EX + 1, S_EX, S_EX + 1, M[j], M[j] + 1))
        self.e("s_cmp_eq_u64 s[%d:%d], 0" % (S_EX, S_EX + 1))
        self.e("s_cbranch_scc1 %s_x" % lab)
        if self.cfg.BK:
            self.e("s_sleep %d" % self.cfg.BK)
        for j, (fn, regs) in enumerate(loads):
            self.e("s_mov_b64 exec, s[%d:%d]" % (M[j], M[j] + 1))
            self.e("s_cbranch_execz %s_l%d" % (lab, j))
            fn()
            self.label("%s_l%d" % (lab, j))
        self.e("s_waitcnt vmcnt(0)")
        self.e("s_sub_u32 s%d, s%d, 1" % (S_SPIN, S_SPIN))
        self.e("s_cmp_gt_i32 s%d, 0" % S_SPIN)
        self.e("s_cbranch_scc1 %s" % lab)
        self.label(lab + "_x")
        self.e("s_mov_b64 exec, -1")
        if local is not None:
            self.e("s_branch %s" % ok)
            self.label(lab + "_lok")
            deferred()
        self.label(ok)
        if after is None:
            self.vm_done = self.vm

    def allred_rows(self, x, t, op):
        self.e("v_mov_b32 v%d, v%d" % (t, x))
        self.nop(2)
        self.e("v_permlane32_swap_b32 v%d, v%d" % (x, t))
        self.nop(1)
        self.e("%s v%d, v%d, v%d" % (op, x, x, t))
        self.e("v_mov_b32 v%d, v%d" % (t, x))
        self.nop(2)
        self.e("v_permlane16_swap_b32 v%d, v%d" % (x, t))
        self.nop(1)
        self.e("%s v%d, v%d, v%d" % (op, x, x, t))

    def ror_red(self, regs, rors, op):
        for n in rors:
            pad = max(0, 3 - len(regs))
            self.nop(pad)
            for x in regs:
                self.e("%s_dpp v%d, v%d, v%d row_ror:%d row_mask:0xf bank_mask:0xf" % (op, x, x, x, n))

    def gemv8(self, wtiles, xregs, xlo, acc):
        for i, x in enumerate(xregs):
            self.e("v_lshrrev_b32 v%d, 16, v%d" % (xlo + i, x))
        for i, (w, x) in enumerate(zip(wtiles, xregs)):
            for d in range(4):
                if i == 0:
                    self.e("v_dot2_f32_bf16 v%d, v%d, v%d, 0" % (acc + 2 * d, w + d, xlo + i))
                    self.e("v_dot2_f32_bf16 v%d, v%d, v%d, 0" % (acc + 2 * d + 1, w + d, x))
                else:
                    self.e("v_dot2c_f32_bf16 v%d, v%d, v%d" % (acc + 2 * d, w + d, xlo + i))
                    self.e("v_dot2c_f32_bf16 v%d, v%d, v%d" % (acc + 2 * d + 1, w + d, x))

    def red_addr(self, taddr, t):
        self.e("v_and_b32 v%d, 1, v%d" % (taddr, V_LANE))
        self.e("v_lshlrev_b32 v%d, 5, v%d" % (taddr, taddr))
        self.e("v_lshrrev_b32 v%d, 4, v%d" % (t, V_LANE))
        self.e("v_lshl_add_u32 v%d, v%d, 3, v%d" % (taddr, t, taddr))
        self.e("s_lshl_b32 s%d, s%d, 6" % (S_T0, S_WAVE))
        self.e("v_add_u32 v%d, s%d, v%d" % (taddr, S_T0, taddr))

    def reduce8_to_lds(self, acc, taddr, red):
        self.nop(3)
        for j in range(4):
            self.e("v_permlane32_swap_b32 v%d, v%d" % (acc + j, acc + j + 4))
        self.nop(1)
        for j in range(4):
            self.e("v_add_f32 v%d, v%d, v%d" % (acc + j, acc + j, acc + j + 4))
        self.nop(1)
        for j in range(2):
            self.e("v_permlane16_swap_b32 v%d, v%d" % (acc + j, acc + j + 2))
        self.nop(1)
        for j in range(2):
            self.e("v_add_f32 v%d, v%d, v%d" % (acc + j, acc + j, acc + j + 2))
        self.ror_red([acc, acc + 1], [8, 4, 2], "v_add_f32")
        self.e("ds_write_b64 v%d, %s offset:%d" % (taddr, vr(acc, 2), red))
        self.lgkm0()
        self.e("s_barrier")

    def sum4_pairs(self, dst, tmp, taddr8, red):
        for w in range(4):
            self.e("ds_read_b64 %s, v%d offset:%d" % (vr(tmp + 2 * w, 2), taddr8, red + 64 * w))
        self.lgkm0()
        self.e("v_pk_add_f32 %s, %s, %s" % (vr(tmp, 2), vr(tmp, 2), vr(tmp + 2, 2)))
        self.e("v_pk_add_f32 %s, %s, %s" % (vr(tmp + 4, 2), vr(tmp + 4, 2), vr(tmp + 6, 2)))
        self.e("v_pk_add_f32 %s, %s, %s" % (vr(dst, 2), vr(tmp, 2), vr(tmp + 4, 2)))

    def exec_lanes(self, n):
        if n < 64:
            self.e("s_mov_b64 exec, 0x%x" % ((1 << n) - 1))

    def exec_all(self):
        self.e("s_mov_b64 exec, -1")


def generate(cfg):
    g = G(cfg)
    e = g.e
    NW, NL = cfg.NW, cfg.NL
    regtiles = [Tile("a", 4 * i) for i in range(64)] + [Tile("v", b) for b in range(NW, 252 if (cfg.DSTAMP or cfg.LSTAMP) else 256, 4)]
    NRT = len(regtiles)
    NKL = NL
    NKR = 128 - NKL
    NVR = NRT - NKR
    assert NVR >= 1
    slots = regtiles[:NKR]
    perm0 = regtiles[NKR:NKR + NVR]
    dtiles = [Tile("v", V_D + 4 * k) for k in range(4)]
    ytiles = [Tile("v", V_Y + 4 * k) for k in range(8)]
    if cfg.PARK:
        perm = ytiles[2:6] + dtiles + perm0 + [ytiles[6]]
    else:
        perm = perm0
    NVR = len(perm)
    def kslot(t):
        return slots[t] if t < NKR else slots[t - NKR]
    def vdef(u):
        if not cfg.VMOD or u >= 128 - NVR - 28:
            return True
        return (u % cfg.VMOD) >= cfg.VMN
    lds_bytes = L_TILES + 4 * NL * 1024
    assert lds_bytes <= 163840, lds_bytes

    out = [HEADER + "; @launch grid=(256,1,1) block=(256,1,1) lds=%d" % lds_bytes]
    out.append('.amdgcn_target "amdgcn-amd-amdhsa--gfx950"\n.text\n.globl %s\n.p2align 8\n.type %s,@function\n%s:' % (KNAME, KNAME, KNAME))

    e("s_cmp_ge_u32 s2, 256")
    e("s_cbranch_scc1 L_end")
    if cfg.STAMP or cfg.DSTAMP or cfg.LSTAMP:
        e("s_memrealtime s[%d:%d]" % (S_STAMP, S_STAMP + 1))
    if cfg.XDS:
        e("s_memrealtime s[72:73]")
        g.lgkm0()
        e("s_add_u32 s74, s72, %d" % (cfg.XDS * 100))
        g.label("L_xds")
        e("s_memrealtime s[76:77]")
        g.lgkm0()
        e("s_sub_u32 s78, s74, s76")
        e("s_cmp_gt_i32 s78, 0")
        e("s_cbranch_scc1 L_xds")
    e("s_load_dwordx16 s[72:87], s[0:1], 0")
    e("s_load_dwordx8 s[88:95], s[0:1], 64")
    e("v_and_b32 v%d, 63, v0" % V_LANE)
    e("v_lshrrev_b32 v%d, 6, v0" % V_T)
    e("s_nop 0")
    e("v_readfirstlane_b32 s%d, v%d" % (S_WAVE, V_T))
    e("s_and_b32 s%d, s2, 7" % S_KVH)
    if cfg.KX:
        e("s_xor_b32 s%d, s%d, %d" % (S_KVH, S_KVH, cfg.KX))
    e("s_lshr_b32 s%d, s2, 3" % S_C)
    e("s_mov_b32 s%d, %d" % (S_SPIN, cfg.SPIN))
    e("s_and_b32 s%d, s2, 7" % S_CB)
    e("s_mul_i32 s%d, s%d, 7" % (S_CB, S_CB))
    e("s_lshr_b32 s%d, s%d, 2" % (S_T0, S_C))
    e("s_add_u32 s%d, s%d, s%d" % (S_CB, S_CB, S_T0))
    e("s_and_b32 s%d, s%d, 3" % (S_KQ, S_C))
    e("s_lshr_b32 s%d, s2, 5" % S_KS)
    e("s_min_u32 s%d, s%d, 6" % (S_KSG, S_KS))
    e("s_and_b32 s%d, s%d, 3" % (S_CN, S_C))
    e("s_lshl_b32 s%d, s%d, 2" % (S_T0, S_KVH))
    e("s_or_b32 s%d, s%d, s%d" % (S_CN, S_CN, S_T0))
    e("s_mov_b32 s%d, 0x%x" % (S_SC, f32bits(SCALE)))
    e("s_mov_b32 s%d, 0" % S_STATE)
    e("s_getreg_b32 s%d, hwreg(HW_REG_XCC_ID)" % S_XCC)
    e("s_lshl_b32 s%d, s%d, 24" % (S_T0, S_KVH))
    e("s_lshl_b32 s%d, s%d, 19" % (S_T1, S_C))
    e("s_add_u32 s%d, s%d, s%d" % (S_T0, S_T0, S_T1))
    e("s_lshl_b32 s%d, s%d, 17" % (S_T1, S_WAVE))
    e("s_add_u32 s%d, s%d, s%d" % (S_T0, S_T0, S_T1))
    e("v_lshlrev_b32 v%d, 4, v%d" % (V_VOFF, V_LANE))
    e("s_mul_i32 s%d, s%d, %d" % (S_T1, S_WAVE, NL * 1024))
    e("s_add_u32 s%d, s%d, %d" % (S_T1, S_T1, L_TILES))
    e("v_add_u32 v%d, s%d, v%d" % (V_LT, S_T1, V_VOFF))
    e("v_add_u32 v%d, s%d, v%d" % (V_VOFF, S_T0, V_VOFF))
    e("v_bfe_u32 v%d, v%d, 2, 2" % (V_T, V_LANE))
    e("v_lshlrev_b32 v%d, 8, v%d" % (V_KOFF, V_T))
    e("v_lshrrev_b32 v%d, 4, v%d" % (V_T + 1, V_LANE))
    e("v_lshl_add_u32 v%d, v%d, 6, v%d" % (V_KOFF, V_T + 1, V_KOFF))
    e("v_and_b32 v%d, 3, v%d" % (V_T + 2, V_LANE))
    e("v_lshl_add_u32 v%d, v%d, 4, v%d" % (V_KOFF, V_T + 2, V_KOFF))
    e("v_add_u32 v%d, s%d, v%d" % (V_KOFF, S_T0, V_KOFF))
    e("v_and_b32 v%d, 48, v%d" % (V_BP, V_LANE))
    e("v_lshl_add_u32 v%d, v%d, 2, v%d" % (V_BP, V_T + 2, V_BP))
    e("v_add_u32 v%d, v%d, v%d" % (V_BP, V_BP, V_T))
    e("v_lshlrev_b32 v%d, 2, v%d" % (V_BP, V_BP))
    e("v_and_b32 v%d, 1, v%d" % (V_T + 3, V_LANE))
    e("v_lshlrev_b32 v%d, 4, v%d" % (V_T + 3, V_T + 3))
    e("v_mov_b32 v%d, 0xffff" % (V_T + 4))
    e("v_lshlrev_b32 v%d, v%d, v%d" % (V_T + 4, V_T + 3, V_T + 4))
    e("v_and_b32 v%d, 2, v%d" % (V_T + 3, V_LANE))
    e("v_cmp_eq_u32 vcc, 0, v%d" % (V_T + 3))
    e("v_mov_b32 v%d, 0" % (V_T + 5))
    e("s_nop 1")
    e("v_cndmask_b32 v%d, v%d, v%d, vcc" % (V_M0, V_T + 5, V_T + 4))
    e("v_cndmask_b32 v%d, v%d, v%d, vcc" % (V_M1, V_T + 4, V_T + 5))
    def build_srd(s_, src, nbytes):
        e("s_mov_b32 s%d, s%d" % (s_, src))
        e("s_and_b32 s%d, s%d, 0xffff" % (s_ + 1, src + 1))
        e("s_mov_b32 s%d, 0x%x" % (s_ + 2, nbytes))
        e("s_mov_b32 s%d, 0x00020000" % (s_ + 3))

    def load_wq(dst, taddr):
        if cfg.XNOW: return g.vm - 1
        e("v_lshrrev_b32 v%d, 1, v%d" % (taddr, V_LANE))
        e("v_lshlrev_b32 v%d, 15, v%d" % (taddr, taddr))
        e("v_and_b32 v%d, 1, v%d" % (taddr + 1, V_LANE))
        e("v_lshl_add_u32 v%d, v%d, 4, v%d" % (taddr, taddr + 1, taddr))
        e("s_lshl_b32 s%d, s%d, 20" % (S_T0, S_WAVE))
        e("s_lshl_b32 s%d, s%d, 10" % (S_T1, S_KVH))
        e("s_add_u32 s%d, s%d, s%d" % (S_T0, S_T0, S_T1))
        e("s_lshl_b32 s%d, s%d, 5" % (S_T1, S_C))
        e("s_add_u32 s%d, s%d, s%d" % (S_T0, S_T0, S_T1))
        g.throttle(4)
        seq = None
        for i in range(4):
            seq = g.vmem("buffer_load_dwordx4 %s, v%d, %s, s%d offen %s" % (vr(dst + 4 * i, 4), taddr, srd(S_WQ), S_T0, cfg.FW))
            if i < 3:
                e("s_add_u32 s%d, s%d, 8192" % (S_T0, S_T0))
        return seq

    def load_wo(dst, taddr):
        if cfg.XNOW: return g.vm - 1
        e("v_lshrrev_b32 v%d, 4, v%d" % (taddr, V_LANE))
        e("v_lshlrev_b32 v%d, 15, v%d" % (taddr, taddr))
        e("v_bfe_u32 v%d, v%d, 1, 3" % (taddr + 1, V_LANE))
        e("v_lshl_add_u32 v%d, v%d, 10, v%d" % (taddr, taddr + 1, taddr))
        e("v_and_b32 v%d, 1, v%d" % (taddr + 1, V_LANE))
        e("v_lshl_add_u32 v%d, v%d, 4, v%d" % (taddr, taddr + 1, taddr))
        e("s_lshl_b32 s%d, s%d, 17" % (S_T0, S_WAVE))
        e("s_lshl_b32 s%d, s%d, 19" % (S_T1, S_KVH))
        e("s_add_u32 s%d, s%d, s%d" % (S_T0, S_T0, S_T1))
        e("s_lshl_b32 s%d, s%d, 5" % (S_T1, S_C))
        e("s_add_u32 s%d, s%d, s%d" % (S_T0, S_T0, S_T1))
        g.throttle(4)
        for i in range(4):
            g.vmem("buffer_load_dwordx4 %s, v%d, %s, s%d offen %s" % (vr(dst + 4 * i, 4), taddr, srd(S_WO), S_T0, cfg.FW))
            if i < 3:
                e("s_add_u32 s%d, s%d, 8192" % (S_T0, S_T0))

    def load_w13(dst, taddr):
        if cfg.XNOW: return g.vm - 1
        e("v_lshrrev_b32 v%d, 2, v%d" % (taddr, V_LANE))
        e("v_mul_u32_u24 v%d, 7168, v%d" % (taddr, taddr))
        e("v_and_b32 v%d, 3, v%d" % (taddr + 1, V_LANE))
        e("v_lshl_add_u32 v%d, v%d, 4, v%d" % (taddr, taddr + 1, taddr))
        e("s_lshl_b32 s%d, s%d, 2" % (S_T0, S_KQ))
        e("s_add_u32 s%d, s%d, s%d" % (S_T0, S_T0, S_WAVE))
        e("s_mul_i32 s%d, s%d, %d" % (S_T0, S_T0, 32 * 3584))
        e("s_lshl_b32 s%d, s%d, 6" % (S_T1, S_CB))
        e("s_add_u32 s%d, s%d, s%d" % (S_T0, S_T0, S_T1))
        g.throttle(4)
        for m, sr in enumerate((S_W1, S_W3)):
            for i in range(2):
                g.vmem("buffer_load_dwordx4 %s, v%d, %s, s%d offen offset:%d %s" % (vr(dst + 8 * m + 4 * i, 4), taddr, srd(sr), S_T0, 3584 * i, cfg.FW))

    def load_w2(dst, taddr):
        if cfg.XNOW: return g.vm - 1
        e("v_lshrrev_b32 v%d, 1, v%d" % (taddr, V_LANE))
        e("v_lshlrev_b32 v%d, 11, v%d" % (taddr, taddr))
        e("v_and_b32 v%d, 1, v%d" % (taddr + 1, V_LANE))
        e("v_lshl_add_u32 v%d, v%d, 4, v%d" % (taddr, taddr + 1, taddr))
        e("s_lshl_b32 s%d, s%d, 16" % (S_T0, S_WAVE))
        e("s_lshl_b32 s%d, s%d, 18" % (S_T1, S_KS))
        e("s_add_u32 s%d, s%d, s%d" % (S_T0, S_T0, S_T1))
        e("s_lshl_b32 s%d, s%d, 5" % (S_T1, S_CN))
        e("s_add_u32 s%d, s%d, s%d" % (S_T0, S_T0, S_T1))
        g.throttle(2)
        for i in range(2):
            g.vmem("buffer_load_dwordx4 %s, v%d, %s, s%d offen offset:%d %s" % (vr(dst + 4 * i, 4), taddr, srd(S_W2), S_T0, 1024 * i, cfg.FW))

    class Stream:
        def __init__(self):
            self.cur_soff = None
            self.we = cfg.WE
            self.wo = cfg.WO
            self.n = 0
            self.p1 = True
            self.dyn = False

        def load(self, which, idx, tile, flags):
            base = (idx >> 2) * 4096
            if self.cur_soff != base:
                e("s_mov_b32 s%d, 0x%x" % (S_SOFF, base))
                self.cur_soff = base
            sr, vo = (S_K, V_KOFF) if which == "K" else (S_V, V_VOFF)
            if self.we and not (self.p1 and which == "K" and idx < cfg.WON) and not (self.p1 and which == "V" and idx >= cfg.WOFF) and not (not self.p1 and idx < cfg.WOFF2):
                lab = g.newlabel("th")
                lab2 = g.newlabel("td")
                if self.dyn:
                    e("s_bitcmp1_b32 s%d, 4" % S_XCC)
                    e("s_cbranch_scc1 %s" % lab2)
                e("s_bitcmp1_b32 s%d, 0" % S_XCC)
                e("s_cbranch_scc1 %s" % lab)
                self.n += 1
                frac = lambda w10: int((self.n * w10) // 10 - ((self.n - 1) * w10) // 10)
                e("s_waitcnt vmcnt(%d)" % frac(self.we))
                g.label(lab)
                if self.wo:
                    e("s_waitcnt vmcnt(%d)" % frac(self.wo))
                if self.dyn:
                    g.label(lab2)
            return g.vmem("buffer_load_dwordx4 %s, v%d, %s, s%d offen offset:%d %s" % (tile.r(), vo, srd(sr), S_SOFF, (idx & 3) * 1024, flags))

    st = Stream()
    stslot = [0]

    def x_to_lds_and_barrier():
        slot = stslot[0]
        stslot[0] ^= 1
        d0, d1, s1, s2 = V_T, V_T + 1, V_T + 2, V_T + 3
        e("v_lshlrev_b32 v%d, 3, v0" % (V_T + 4))
        e("ds_write_b64 v%d, %s offset:%d" % (V_T + 4, vr(V_XR, 2), L_XL))
        e("v_subrev_f32 v%d, s%d, v%d" % (d0, S_PIV, V_XR))
        e("v_subrev_f32 v%d, s%d, v%d" % (d1, S_PIV, V_XR + 1))
        e("v_add_f32 v%d, v%d, v%d" % (s1, d0, d1))
        e("v_mul_f32 v%d, v%d, v%d" % (s2, d0, d0))
        e("v_fmac_f32 v%d, v%d, v%d" % (s2, d1, d1))
        e("v_lshrrev_b32 v%d, 4, v0" % (V_T + 4))
        e("v_lshlrev_b32 v%d, 3, v%d" % (V_T + 4, V_T + 4))
        g.ror_red([s1, s2], [8, 4, 2, 1], "v_add_f32")
        e("ds_write_b64 v%d, %s offset:%d" % (V_T + 4, vr(s1, 2), L_ST + 128 * slot))
        g.lgkm0()
        e("s_barrier")
        return slot

    def ln_finish(slot, mine, nmine, t):
        s1, s2, a = t, t + 1, t + 2
        g.ror_red([s1, s2], [8, 4, 2, 1], "v_add_f32")
        inv = f32bits(1.0 / 512)
        e("v_mul_f32 v%d, 0x%x, v%d" % (s1, inv, s1))
        e("v_mul_f32 v%d, 0x%x, v%d" % (s2, inv, s2))
        e("v_fma_f32 v%d, -v%d, v%d, v%d" % (s2, s1, s1, s2))
        e("v_max_f32 v%d, 0, v%d" % (s2, s2))
        e("v_add_f32 v%d, s%d, v%d" % (s1, S_PIV, s1))
        e("v_cvt_pk_bf16_f32 v%d, v%d, v%d" % (a, s1, s2))
        e("v_lshlrev_b32 v%d, 16, v%d" % (s1, a))
        e("v_and_b32 v%d, 0xffff0000, v%d" % (s2, a))
        e("v_add_f32 v%d, 0x%x, v%d" % (s2, f32bits(1e-5), s2))
        g.bf16r(s2, a)
        e("v_sqrt_f32 v%d, v%d" % (s2, s2))
        for i in range(nmine):
            e("v_sub_f32 v%d, v%d, v%d" % (mine + i, mine + i, s1))
        g.bf16r(s2, a)
        e("v_rcp_f32 v%d, v%d" % (s2, s2))
        for i in range(0, nmine, 2):
            e("v_cvt_pk_bf16_f32 v%d, v%d, v%d" % (a, mine + i, mine + i + 1))
            e("v_lshlrev_b32 v%d, 16, v%d" % (mine + i, a))
            e("v_and_b32 v%d, 0xffff0000, v%d" % (mine + i + 1, a))
        for i in range(nmine):
            e("v_mul_f32 v%d, v%d, v%d" % (mine + i, mine + i, s2))
        for i in range(0, nmine, 2):
            e("v_cvt_pk_bf16_f32 v%d, v%d, v%d" % (a, mine + i, mine + i + 1))
            e("v_lshlrev_b32 v%d, 16, v%d" % (mine + i, a))
            e("v_and_b32 v%d, 0xffff0000, v%d" % (mine + i + 1, a))

    def q_stage_compute(slot, wregs, scr):
        mine, acc, t, xlo = V_B, V_O, V_U, scr
        e("v_and_b32 v%d, 15, v%d" % (V_T, V_LANE))
        e("v_lshlrev_b32 v%d, 3, v%d" % (V_T, V_T))
        e("ds_read_b64 %s, v%d offset:%d" % (vr(t, 2), V_T, L_ST + 128 * slot))
        e("v_lshrrev_b32 v%d, 1, v%d" % (V_T + 1, V_LANE))
        e("v_lshlrev_b32 v%d, 4, v%d" % (V_T + 1, V_T + 1))
        e("s_lshl_b32 s%d, s%d, 9" % (S_T0, S_WAVE))
        e("v_add_u32 v%d, s%d, v%d" % (V_T + 1, S_T0, V_T + 1))
        e("ds_read_b128 %s, v%d offset:%d" % (vr(mine, 4), V_T + 1, L_XL))
        g.red_addr(V_T + 2, V_T + 3)
        e("v_and_b32 v%d, 7, v%d" % (V_T + 3, V_LANE))
        e("v_lshlrev_b32 v%d, 3, v%d" % (V_T + 3, V_T + 3))
        g.lgkm0()
        ln_finish(slot, mine, 4, t)
        g.gemv8([wregs + 4 * i for i in range(4)], [mine + i for i in range(4)], xlo, acc)
        g.reduce8_to_lds(acc, V_T + 2, L_RED)
        g.sum4_pairs(V_U, V_O, V_T + 3, L_RED)
        e("v_cvt_pk_bf16_f32 v%d, v%d, v%d" % (V_U + 2, V_U, V_U + 1))
        e("v_min_u32 v%d, -2, v%d" % (V_U + 2, V_U + 2))
        e("v_lshlrev_b32 v%d, 2, v%d" % (V_U + 3, V_LANE))

    def q_pub_addr(it):
        e("s_lshl_b32 s%d, s%d, 10" % (S_P0, S_KVH))
        e("s_lshl_b32 s%d, s%d, 5" % (S_T1, S_C))
        e("s_add_u32 s%d, s%d, s%d" % (S_P0, S_P0, S_T1))
        e("s_add_u32 s%d, s%d, 0x%x" % (S_P0, S_P0, (ITS + QB if it else QB0)))

    def wave0_store(instr, nlanes, extra_skip=None):
        lab = g.newlabel("w0")
        e("s_cmp_lg_u32 s%d, 0" % S_WAVE)
        e("s_cbranch_scc1 %s" % lab)
        if extra_skip:
            e(extra_skip)
            e("s_cbranch_scc1 %s" % lab)
        g.exec_lanes(nlanes)
        g.vmem(instr, counted=False)
        g.exec_all()
        g.label(lab)

    def q_publish():
        wave0_store("buffer_store_dword v%d, v%d, %s, s%d offen sc1" % (V_U + 2, V_U + 3, srd(S_WS), S_P0), 8)

    def q_gather_addr(it, va):
        e("v_and_b32 v%d, 3, v%d" % (va, V_LANE))
        e("v_lshlrev_b32 v%d, 8, v%d" % (va, va))
        e("v_lshrrev_b32 v%d, 2, v%d" % (va + 1, V_LANE))
        e("v_lshl_add_u32 v%d, v%d, 4, v%d" % (va, va + 1, va))
        e("s_lshl_b32 s%d, s%d, 10" % (S_R0, S_KVH))
        e("s_add_u32 s%d, s%d, 0x%x" % (S_R0, S_R0, (ITS + QB if it else QB0)))

    def q_gather_issue(va):
        g.vmem("buffer_load_dwordx4 %s, v%d, %s, s%d offen sc1" % (vr(V_Q, 4), va, srd(S_WS), S_R0), counted=False)

    dring = [[V_D, V_D + 4, V_D + 8, V_D + 12]]

    def qk_mfma(t, tile, n):
        if cfg.XNOQK: return
        d = dring[0][n & 3]
        e("v_mfma_f32_16x16x32_bf16 %s, %s, %s, 0" % (vr(d, 4), tile.r(), vr(V_Q, 4)))

    def qk_adds(t, n):
        if cfg.XNOQK: return
        d = dring[0][n & 3]
        G_, c4 = t >> 2, t & 3
        y = V_Y + G_
        first = True
        for q in range(4):
            if q == c4:
                continue
            n = 4 * ((c4 - q) & 3)
            src1 = d + c4 if first else y
            e("v_add_f32_dpp v%d, v%d, v%d row_ror:%d row_mask:0xf bank_mask:0x%x" % (y, d + q, src1, n, 1 << c4))
            first = False

    def softmax(it, hook=None):
        if cfg.XNOSM: return
        m, l, t = V_T, V_T + 1, V_T + 2
        e("v_max3_f32 v%d, v%d, v%d, v%d" % (m, V_Y, V_Y + 1, V_Y + 2))
        for i in range(3, 31, 2):
            e("v_max3_f32 v%d, v%d, v%d, v%d" % (m, m, V_Y + i, V_Y + i + 1))
        e("v_max_f32 v%d, v%d, v%d" % (m, m, V_Y + 31))
        g.ror_red([m], [8, 4], "v_max_f32")
        g.allred_rows(m, t, "v_max_f32")
        e("v_mul_f32 v%d, s%d, v%d" % (t, S_SC, m))
        e("v_mov_b32 v%d, 0" % l)
        for i in range(32):
            e("v_fma_f32 v%d, v%d, s%d, -v%d" % (V_Y + i, V_Y + i, S_SC, t))
        for i in range(32):
            e("v_exp_f32 v%d, v%d" % (V_Y + i, V_Y + i))
            if hook and i % 8 == 0: hook()
        for i in range(32):
            e("v_add_f32 v%d, v%d, v%d" % (l, l, V_Y + i))
            e("v_cvt_pk_bf16_f32 v%d, v%d, v%d" % (V_Y + i, V_Y + i, V_Y + i))
            if hook and i % 8 == 0: hook()
        for i in range(32):
            e("ds_bpermute_b32 v%d, v%d, v%d" % (V_Y + i, V_BP, V_Y + i))
            if i % 8 == 7:
                g.lgkm0()
        g.ror_red([l], [8, 4], "v_add_f32")
        g.allred_rows(l, t, "v_add_f32")
        e("v_min_u32 v%d, -2, v%d" % (m, m))
        e("v_min_u32 v%d, -2, v%d" % (l, l))
        e("v_lshlrev_b32 v%d, 10, v%d" % (t, V_LANE))
        e("s_lshl_b32 s%d, s%d, 12" % (S_T0, S_KVH))
        e("s_lshl_b32 s%d, s%d, 5" % (S_T1, S_C))
        e("s_add_u32 s%d, s%d, s%d" % (S_T0, S_T0, S_T1))
        e("s_lshl_b32 s%d, s%d, 3" % (S_T1, S_WAVE))
        e("s_add_u32 s%d, s%d, s%d" % (S_T0, S_T0, S_T1))
        e("s_add_u32 s%d, s%d, 0x%x" % (S_T0, S_T0, it * ITS + RML))
        g.exec_lanes(4)
        g.vmem("buffer_store_dwordx2 %s, v%d, %s, s%d offen sc1" % (vr(m, 2), t, srd(S_WS), S_T0), counted=False)
        g.exec_all()
        for i in range(8):
            e("v_mov_b32 v%d, 0" % (V_O + i))

    def ml_addr(it):
        e("v_lshlrev_b32 v%d, 4, v%d" % (V_T, V_LANE))
        e("v_lshrrev_b32 v%d, 2, v%d" % (V_T + 1, V_LANE))
        e("v_lshlrev_b32 v%d, 4, v%d" % (V_T + 1, V_T + 1))
        e("s_lshl_b32 s%d, s%d, 8" % (S_T0, S_WAVE))
        e("v_add_u32 v%d, s%d, v%d" % (V_T + 1, S_T0, V_T + 1))
        e("s_lshl_b32 s%d, s%d, 12" % (S_R1, S_KVH))
        e("s_lshr_b32 s%d, s%d, 3" % (S_T0, S_C))
        e("s_lshl_b32 s%d, s%d, 10" % (S_T0, S_T0))
        e("s_add_u32 s%d, s%d, s%d" % (S_R1, S_R1, S_T0))
        e("s_add_u32 s%d, s%d, 0x%x" % (S_R1, S_R1, it * ITS + RML))

    def ml_issue(counted):
        g.vmem("buffer_load_dwordx4 %s, v%d, %s, s%d offen sc1" % (vr(V_U, 4), V_T, srd(S_WS), S_R1), counted=counted)
        return g.vmem("buffer_load_dwordx4 %s, v%d, %s, s%d offen sc1" % (vr(V_U + 4, 4), V_T + 1, srd(S_WS), S_R1), counted=counted)

    def ml_compute():
        M, Lr, t = V_T + 2, V_T + 3, V_T + 4
        e("v_max_f32 v%d, v%d, v%d" % (M, V_U, V_U + 2))
        g.ror_red([M], [8, 4, 2, 1], "v_max_f32")
        g.allred_rows(M, t, "v_max_f32")
        e("v_mul_f32 v%d, s%d, v%d" % (M, S_SC, M))
        for k in (0, 2, 4, 6):
            e("v_fma_f32 v%d, v%d, s%d, -v%d" % (V_U + k, V_U + k, S_SC, M))
        for k in (0, 2, 4, 6):
            e("v_exp_f32 v%d, v%d" % (V_U + k, V_U + k))
        g.nop(1)
        e("v_mul_f32 v%d, v%d, v%d" % (Lr, V_U, V_U + 1))
        e("v_fmac_f32 v%d, v%d, v%d" % (Lr, V_U + 2, V_U + 3))
        g.ror_red([Lr], [8, 4, 2, 1], "v_add_f32")
        g.allred_rows(Lr, t, "v_add_f32")
        e("v_rcp_f32 v%d, v%d" % (Lr, Lr))
        g.nop(1)
        e("v_mul_f32 v%d, v%d, v%d" % (V_U, V_U + 4, Lr))
        e("v_mul_f32 v%d, v%d, v%d" % (V_U + 1, V_U + 6, Lr))

    def ml_try_check(seq):
        lab = g.newlabel("mlt")
        g.wait_side(seq)
        g.check_sent([V_U + k for k in range(8)], V_T + 2)
        e("s_mov_b32 s%d, 0" % S_MLOK)
        e("s_cbranch_vccnz %s" % lab)
        ml_compute()
        e("s_mov_b32 s%d, 1" % S_MLOK)
        g.label(lab)

    def pv_b(u, slot):
        if cfg.XNOPVB: return
        G_, c4 = u >> 2, u & 3
        b = V_B + 2 * slot
        qp = "quad_perm:[%d,%d,%d,%d] row_mask:0xf bank_mask:0xf" % (c4, c4, c4, c4)
        e("v_and_b32_dpp v%d, v%d, v%d %s" % (b, V_Y + G_, V_M0, qp))
        e("v_and_b32_dpp v%d, v%d, v%d %s" % (b + 1, V_Y + G_, V_M1, qp))

    def pv_mfma(tile, slot):
        if cfg.XNOPV: return
        b = V_B + 2 * slot
        e("v_mfma_f32_16x16x16_bf16 %s, %s, %s, %s" % (vr(V_O, 4), tile.r(0, 2), vr(b, 2), vr(V_O, 4)))
        e("v_mfma_f32_16x16x16_bf16 %s, %s, %s, %s" % (vr(V_O + 4, 4), tile.r(2, 2), vr(b, 2), vr(V_O + 4, 4)))

    loads = [("K", t) for t in range(128)] + [("V", u) for u in range(128)]
    dest, seqs = {}, {}
    state = {"issued": 0, "consumed": 0}
    pool = []
    perm_free = [any(p is q for q in perm0) for p in perm]

    def release(tile):
        for k, p in enumerate(perm):
            if p is tile:
                perm_free[k] = True
                return
        pool.append(tile)
    retire = set()

    def issue_one():
        i = state["issued"]
        which, idx = loads[i]
        kind = None
        if which == "K":
            if idx >= NKR and state["consumed"] <= idx - NKR:
                return False
            tile = kslot(idx)
        else:
            if idx >= 128 - NVR:
                k = idx - (128 - NVR)
                if not perm_free[k]:
                    return False
                tile, kind = perm[k], ("perm", k)
            elif pool:
                tile, kind = pool.pop(0), ("pool", None)
            else:
                ks = [k for k in range(NVR) if perm_free[k]]
                if not ks or idx >= 128 - NVR - cfg.PGAP:
                    return False
                tile, kind = perm[ks[0]], ("perm", ks[0])
            if kind[0] == "perm":
                perm_free[kind[1]] = False
        g.throttle(1)
        seqs[i] = st.load(which, idx, tile, cfg.FK1 if which == "K" else ("" if (cfg.VDEF <= idx < 128 - NVR and vdef(idx)) else cfg.FV1))
        dest[i] = (tile, kind)
        state["issued"] += 1
        return True

    def issue_n(n):
        for _ in range(n):
            assert issue_one()

    def issue_upto(depth):
        while state["issued"] < len(loads) and state["issued"] - state["consumed"] < depth:
            if not issue_one():
                break

    def consumed(i):
        tile, kind = dest[i]
        if kind is not None:
            if kind[0] == "perm":
                perm_free[kind[1]] = True
            elif id(tile) not in retire:
                pool.append(tile)
        state["consumed"] = i + 1

    utiles = [Tile("v", V_U), Tile("v", V_U + 4)]

    g.lgkm0()
    build_srd(S_K, 74, 1 << 27)
    e("s_load_dword s%d, s[72:73], 0" % S_PIV)
    issue_n(cfg.IFIRST)
    for (s_, src, nbytes) in [(S_X, 72, 1024), (S_WQ, 78, 512 * 4096 * 2), (S_WS, 94, 1 << 29), (S_V, 76, 1 << 27),
                              (S_WO, 80, 4096 * 512 * 2), (S_W1, 84, 512 * 1792 * 2), (S_W3, 86, 512 * 1792 * 2),
                              (S_W2, 88, 1792 * 512 * 2), (S_OUT, 90, 1024), (S_DBG, 92, 256)]:
        build_srd(s_, src, nbytes)
    e("v_lshlrev_b32 v%d, 2, v0" % (V_U + 5))
    xseq = g.vmem("buffer_load_dword v%d, v%d, %s, 0 offen" % (V_XR, V_U + 5, srd(S_X)))
    for k in range(4):
        e("v_mov_b32 v%d, -1" % (V_U + k))
    e("v_lshlrev_b32 v%d, 4, v0" % (V_U + 4))
    e("s_mul_i32 s%d, s2, 10240" % S_T0)
    for k in range(2):
        g.vmem("buffer_store_dwordx4 %s, v%d, %s, s%d offen sc1" % (vr(V_U, 4), V_U + 4, srd(S_WS), S_T0), counted=False)
        e("s_add_u32 s%d, s%d, 4096" % (S_T0, S_T0))
    e("s_cmp_ge_u32 s%d, 2" % S_WAVE)
    e("s_cbranch_scc1 L_clr0")
    g.vmem("buffer_store_dwordx4 %s, v%d, %s, s%d offen sc1" % (vr(V_U, 4), V_U + 4, srd(S_WS), S_T0), counted=False)
    g.label("L_clr0")

    if cfg.XW:
        e("s_waitcnt vmcnt(0)")
        g.stamp()
        for nm, fn, r in (("q", load_wq, V_WQ), ("o", load_wo, V_WO), ("g", load_w13, V_W13), ("d", load_w2, V_W2)):
            if nm in cfg.XW:
                fn(r, V_T)
                if "s" in cfg.XW:
                    e("s_waitcnt vmcnt(0)")
                    g.stamp()
        e("s_waitcnt vmcnt(0)")
        g.stamp()
        e("s_endpgm")
    wqseq = load_wq(V_WQ, V_T)
    if cfg.WPOS == 0:
        load_wo(V_WO, V_T)
        load_w13(V_W13, V_T)
        load_w2(V_W2, V_T)
    IB = cfg.IB
    bseq = []

    def batch():
        if len(bseq) >= cfg.IWIN:
            g.wait_vm(bseq[len(bseq) - cfg.IWIN])
        issue_n(IB)
        bseq.append(g.vm - 1)

    for _ in range(cfg.IUP):
        issue_n(IB)
        bseq.append(g.vm - 1)
    g.wait_vm(wqseq)
    e("v_and_b32 v%d, 0xffff0000, v%d" % (V_XR + 1, V_XR))
    e("v_lshlrev_b32 v%d, 16, v%d" % (V_XR, V_XR))
    g.lgkm0()
    e("s_lshl_b32 s%d, s%d, 16" % (S_PIV, S_PIV))
    g.stamp()
    slot = x_to_lds_and_barrier()
    q_stage_compute(slot, V_WQ, V_Y)
    q_pub_addr(0)
    q_publish()
    if cfg.STAMP2: g.stamp()
    q_gather_addr(0, V_T + 4)
    e("v_and_b32 v%d, 7, v%d" % (V_T + 2, V_LANE))
    e("v_lshlrev_b32 v%d, 2, v%d" % (V_T + 2, V_T + 2))
    e("s_lshl_b32 s%d, s%d, 5" % (S_T2, S_KVH))
    e("s_add_u32 s%d, s%d, s%d" % (S_P0, S_T2, S_C))
    e("s_mov_b32 s%d, 0x01010101" % S_R1)
    e("v_mov_b32 v%d, 1" % (V_U + 4))
    e("v_mov_b32 v%d, 0" % (V_U + 5))
    batch()
    mark = g.vm - IB
    batch()
    g.wait_vm(mark)
    wave0_store("buffer_store_byte v%d, v%d, %s, s%d offen sc1" % (V_U + 4, V_U + 5, srd(S_DBG), S_P0), 1)
    for _ in range(cfg.IDLY):
        batch()

    if cfg.NOQ:
        e("s_mov_b32 s%d, 2" % S_STATE)

    def attempt(nb):
        la = g.newlabel("att")
        if nb and len(bseq) >= cfg.IWIN:
            g.wait_vm(bseq[len(bseq) - cfg.IWIN])
        e("s_cmp_eq_u32 s%d, 2" % S_STATE)
        e("s_cbranch_scc1 %s_k" % la)
        e("s_cmp_eq_u32 s%d, 1" % S_STATE)
        e("s_cbranch_scc1 %s_q" % la)
        e("v_mov_b32 v%d, 0" % (V_T + 3))
        g.vmem("buffer_load_dword v%d, v%d, %s, s%d offen sc1" % (V_T + 3, V_T + 2, srd(S_DBG), S_T2), counted=False)
        e("s_branch %s_k" % la)
        g.label(la + "_q")
        for k in range(4):
            e("v_mov_b32 v%d, -1" % (V_Q + k))
        q_gather_issue(V_T + 4)
        g.label(la + "_k")
        if nb:
            issue_n(nb)
            bseq.append(g.vm - 1)
        e("s_cmp_eq_u32 s%d, 2" % S_STATE)
        e("s_cbranch_scc1 %s_n" % la)
        e("s_waitcnt vmcnt(%d)" % nb)
        e("s_cmp_eq_u32 s%d, 1" % S_STATE)
        e("s_cbranch_scc1 %s_cq" % la)
        e("v_cmp_ne_u32 vcc, s%d, v%d" % (S_R1, V_T + 3))
        e("s_cbranch_vccnz %s_n" % la)
        e("s_mov_b32 s%d, 1" % S_STATE)
        e("s_branch %s_n" % la)
        g.label(la + "_cq")
        g.check_sent([V_Q + k for k in range(4)], V_T)
        e("s_cbranch_vccnz %s_n" % la)
        e("s_mov_b32 s%d, 2" % S_STATE)
        g.label(la + "_n")

    while state["issued"] + IB <= NKR:
        attempt(IB)
        if cfg.STAMP2:
            g.stamp()
            e("v_mov_b32 v%d, s%d" % (V_U + 6, S_STATE))
            g.vmem("buffer_store_dword v%d, v%d, %s, s%d offen offset:128" % (V_U + 6, V_U + 7, srd(S_WS), S_T0))
    lab = g.newlabel("fb")
    g.label(lab)
    e("s_cmp_eq_u32 s%d, 2" % S_STATE)
    e("s_cbranch_scc1 %s_done" % lab)
    e("s_sleep 4")
    attempt(0)
    e("s_sub_u32 s%d, s%d, 1" % (S_SPIN, S_SPIN))
    e("s_cmp_gt_i32 s%d, 0" % S_SPIN)
    e("s_cbranch_scc1 %s" % lab)
    g.label(lab + "_done")
    e("v_lshlrev_b32 v%d, 2, v%d" % (V_U + 4, V_LANE))
    e("s_mov_b32 s%d, 0x01010101" % S_STATE)
    g.stamp()

    def clr_issue(counted):
        return g.vmem("buffer_load_dword v%d, v%d, %s, 0 offen sc1" % (V_U + 5, V_U + 4, srd(S_DBG)), counted=counted)

    def clr_check():
        e("v_cmp_ne_u32 vcc, s%d, v%d" % (S_STATE, V_U + 5))

    def clr_wait(seq):
        lab = g.newlabel("clr")
        g.wait_side(seq)
        clr_check()
        e("s_cbranch_vccz %s_ok" % lab)
        g.label(lab)
        e("s_sleep 8")
        clr_issue(False)
        e("s_waitcnt vmcnt(0)")
        clr_check()
        e("s_cbranch_vccz %s_ok" % lab)
        e("s_sub_u32 s%d, s%d, 1" % (S_SPIN, S_SPIN))
        e("s_cmp_gt_i32 s%d, 0" % S_SPIN)
        e("s_cbranch_scc1 %s" % lab)
        g.label(lab + "_ok")

    vres = {}

    def x_gather(off, n, pre):
        regs = [V_O + 2 * k for k in range(4)] + [V_U + 2 * k for k in range(4)]
        e("v_lshlrev_b32 v%d, 3, v0" % (V_T + 4))

        for k in range(0, n, 2):
            e("s_mov_b32 s%d, 0x%x" % (S_XO + k // 2, off + 2048 * k))

        def mk(k):
            return lambda: g.vmem("buffer_load_dwordx2 %s, v%d, %s, s%d offen offset:%d sc1" % (vr(regs[k], 2), V_T + 4, srd(S_WS), S_XO + k // 2, 2048 * (k & 1)), counted=False)
        g.poll([(mk(k), [regs[k], regs[k] + 1]) for k in range(n)], V_T, "xg", pre)
        live = regs[:n]
        while len(live) > 1:
            nxt = []
            for a in range(0, len(live) - 1, 2):
                e("v_pk_add_f32 %s, %s, %s" % (vr(live[a], 2), vr(live[a], 2), vr(live[a + 1], 2)))
                nxt.append(live[a])
            if len(live) % 2:
                nxt.append(live[-1])
            live = nxt
        r = live[0]
        e("v_cvt_pk_bf16_f32 v%d, v%d, v%d" % (V_T, r, r + 1))
        e("v_lshlrev_b32 v%d, 16, v%d" % (r, V_T))
        e("v_and_b32 v%d, 0xffff0000, v%d" % (r + 1, V_T))
        e("v_pk_add_f32 %s, %s, %s" % (vr(V_XR, 2), vr(V_XR, 2), vr(r, 2)))
        e("v_cvt_pk_bf16_f32 v%d, v%d, v%d" % (V_T, V_XR, V_XR + 1))
        e("v_lshlrev_b32 v%d, 16, v%d" % (V_XR, V_T))
        e("v_and_b32 v%d, 0xffff0000, v%d" % (V_XR + 1, V_T))

    def rec_addr_pre(it, va):
        e("v_bfe_u32 v%d, v%d, 2, 2" % (va, V_LANE))
        e("v_lshlrev_b32 v%d, 16, v%d" % (va, va))
        e("v_lshrrev_b32 v%d, 4, v%d" % (va + 1, V_LANE))
        e("v_lshl_add_u32 v%d, v%d, 14, v%d" % (va, va + 1, va))
        e("v_and_b32 v%d, 3, v%d" % (va + 1, V_LANE))
        e("v_lshl_add_u32 v%d, v%d, 4, v%d" % (va, va + 1, va))
        e("s_lshl_b32 s%d, s%d, 18" % (S_P0, S_KVH))
        e("s_lshl_b32 s%d, s%d, 8" % (S_T1, S_C))
        e("s_add_u32 s%d, s%d, s%d" % (S_P0, S_P0, S_T1))
        e("s_lshl_b32 s%d, s%d, 6" % (S_T1, S_WAVE))
        e("s_add_u32 s%d, s%d, s%d" % (S_P0, S_P0, S_T1))
        e("s_add_u32 s%d, s%d, 0x%x" % (S_P0, S_P0, it * ITS + RO))

    def chain(it, W13, W2R, SCR):
        base = it * ITS
        va = V_U + 2
        g.nop(8)
        for k in range(8):
            e("v_min_u32 v%d, -2, v%d" % (V_O + k, V_O + k))
        e("s_add_u32 s%d, s%d, 8192" % (S_T0, S_P0))
        g.vmem("buffer_store_dwordx4 %s, v%d, %s, s%d offen sc1" % (vr(V_O, 4), va, srd(S_WS), S_P0))
        g.vmem("buffer_store_dwordx4 %s, v%d, %s, s%d offen sc1" % (vr(V_O + 4, 4), va, srd(S_WS), S_T0))
        g.stamp()
        if cfg.XEND2 == 1:
            e("s_endpgm")
        if cfg.WPOS == 4 and it == 0:
            load_wo(V_WO, V_T)
            load_w13(V_W13, V_T)
            load_w2(V_W2, V_T)
        if cfg.VBAR:
            e("s_barrier")
        if cfg.HDONE:
            done = 1000 * (it + 1)
            lab = g.newlabel("hd")
            e("v_mov_b32 v%d, 0x%x" % (V_T + 4, done))
            wave0_store("buffer_store_dword v%d, v%d, %s, s%d offen" % (V_T + 4, V_LANE, srd(S_WS), S_PRS), 1)
            e("v_and_b32 v%d, 31, v%d" % (V_T + 4, V_LANE))
            e("v_lshl_add_u32 v%d, v%d, 2, s%d" % (V_T + 4, V_T + 4, S_PRL))
            e("s_mov_b32 s%d, %d" % (S_T2, cfg.HDONE))
            e("s_mov_b32 s%d, 1" % S_LOC)
            g.label(lab)
            g.vmem("buffer_load_dword v%d, v%d, %s, 0 offen sc1" % (V_T + 5, V_T + 4, srd(S_WS)), counted=False)
            e("s_waitcnt vmcnt(0)")
            e("v_cmp_gt_i32 vcc, 0x%x, v%d" % (done, V_T + 5))
            e("s_cbranch_vccz %s_ok" % lab)
            e("s_sub_u32 s%d, s%d, 1" % (S_T2, S_T2))
            e("s_cmp_gt_i32 s%d, 0" % S_T2)
            e("s_cbranch_scc1 %s" % lab)
            e("s_mov_b32 s%d, 0" % S_LOC)
            g.label(lab + "_ok")
        if cfg.WPOS == 3 and it == 0:
            load_wo(V_WO, V_T)
            load_w13(V_W13, V_T)
            load_w2(V_W2, V_T)
        if cfg.WPOS == 5 and it == 0:
            load_w13(V_W13, V_T)
            load_w2(V_W2, V_T)
        lab = g.newlabel("mls")
        e("s_cmp_eq_u32 s%d, 1" % S_MLOK)
        e("s_cbranch_scc1 %s" % lab)
        sv = g.vm_done
        ml_addr(it)
        g.poll([(lambda: g.vmem("buffer_load_dwordx4 %s, v%d, %s, s%d offen sc1" % (vr(V_U, 4), V_T, srd(S_WS), S_R1), counted=False), [V_U + k for k in range(4)]),
                (lambda: g.vmem("buffer_load_dwordx4 %s, v%d, %s, s%d offen sc1" % (vr(V_U + 4, 4), V_T + 1, srd(S_WS), S_R1), counted=False), [V_U + 4 + k for k in range(4)])],
               V_T + 2, "ml")
        ml_compute()
        g.vm_done = sv
        g.label(lab)
        a1_after = None
        if cfg.WPOS == 6 and it == 0:
            def a1_after():
                load_wo(V_WO, V_T + 3)
                load_w13(V_W13, V_T + 3)
                load_w2(V_W2, V_T + 3)
        o0, o1 = SCR, SCR + 4
        e("v_lshrrev_b32 v%d, 2, v%d" % (V_T, V_LANE))
        e("v_lshlrev_b32 v%d, 7, v%d" % (V_T, V_T))
        e("v_and_b32 v%d, 3, v%d" % (V_T + 1, V_LANE))
        e("v_lshlrev_b32 v%d, 4, v%d" % (V_T + 1, V_T + 1))
        e("v_add_u32 v%d, v%d, v%d" % (V_T, V_T, V_T + 1))
        e("s_lshl_b32 s%d, s%d, 5" % (S_R0, S_KVH))
        e("s_add_u32 s%d, s%d, s%d" % (S_R0, S_R0, S_C))
        e("s_lshl_b32 s%d, s%d, 13" % (S_R0, S_R0))
        e("s_lshl_b32 s%d, s%d, 11" % (S_T0, S_WAVE))
        e("s_add_u32 s%d, s%d, s%d" % (S_R0, S_R0, S_T0))
        e("s_add_u32 s%d, s%d, 0x%x" % (S_R0, S_R0, base + RO))
        e("s_lshl_b32 s%d, s%d, 13" % (S_P0, S_KVH))
        e("s_add_u32 s%d, s%d, s%d" % (S_P0, S_P0, S_T0))
        e("s_lshl_b32 s%d, s%d, 6" % (S_T1, S_C))
        e("s_add_u32 s%d, s%d, s%d" % (S_P0, S_P0, S_T1))
        e("s_add_u32 s%d, s%d, 0x%x" % (S_P0, S_P0, base + OB))
        if cfg.LOC and cfg.LWARM:
            e("s_add_u32 s%d, s%d, 0x%x" % (S_T0, S_P0, OBL - OB))
            g.vmem("buffer_load_dword v%d, v%d, %s, s%d offen sc1" % (V_B, V_T + 1, srd(S_WS), S_T0), counted=False)

        g.poll([(lambda: g.vmem("buffer_load_dwordx4 %s, v%d, %s, s%d offen sc1" % (vr(o0, 4), V_T, srd(S_WS), S_R0), counted=False), [o0 + i for i in range(4)]),
                (lambda: g.vmem("buffer_load_dwordx4 %s, v%d, %s, s%d offen offset:64 sc1" % (vr(o1, 4), V_T, srd(S_WS), S_R0), counted=False), [o1 + i for i in range(4)])],
               V_T + 2, "a1", cfg.P_A1, a1_after)
        for k in range(4):
            e("v_mul_f32 v%d, v%d, v%d" % (o0 + k, V_U, o0 + k))
        for k in range(4):
            e("v_fmac_f32 v%d, v%d, v%d" % (o0 + k, V_U + 1, o1 + k))
        g.ror_red([o0 + k for k in range(4)], [8, 4], "v_add_f32")
        for k in range(4):
            e("v_mov_b32 v%d, v%d" % (o1 + k, o0 + k))
        for k in range(4):
            e("v_permlane32_swap_b32 v%d, v%d" % (o0 + k, o1 + k))
        for k in range(4):
            e("v_add_f32 v%d, v%d, v%d" % (o0 + k, o0 + k, o1 + k))
        for k in range(4):
            e("v_mov_b32 v%d, v%d" % (o1 + k, o0 + k))
        for k in range(4):
            e("v_permlane16_swap_b32 v%d, v%d" % (o0 + k, o1 + k))
        for k in range(4):
            e("v_add_f32 v%d, v%d, v%d" % (o0 + k, o0 + k, o1 + k))
        for k in range(4):
            e("v_min_u32 v%d, -2, v%d" % (o0 + k, o0 + k))
        g.exec_lanes(4)
        if cfg.LOC:
            e("s_add_u32 s%d, s%d, 0x%x" % (S_T0, S_P0, OBL - OB))
            g.vmem("buffer_store_dwordx4 %s, v%d, %s, s%d offen" % (vr(o0, 4), V_T + 1, srd(S_WS), S_T0), counted=False)
            e("s_mov_b32 s%d, s%d" % (S_XO + 2, S_P0))
        else:
            g.vmem("buffer_store_dwordx4 %s, v%d, %s, s%d offen sc1" % (vr(o0, 4), V_T + 1, srd(S_WS), S_P0), counted=False)
        g.exec_all()

        def ob_global():
            g.exec_lanes(4)
            g.vmem("buffer_store_dwordx4 %s, v%d, %s, s%d offen sc1" % (vr(o0, 4), V_T + 1, srd(S_WS), S_XO + 2), counted=False)
            g.exec_all()
        g.stamp()
        if cfg.XEND2 == 2:
            e("s_endpgm")

        og = [V_O, V_O + 4, V_U, V_U + 4]
        e("v_lshrrev_b32 v%d, 1, v%d" % (V_T + 4, V_LANE))
        e("v_lshlrev_b32 v%d, 4, v%d" % (V_T + 4, V_T + 4))
        e("s_lshl_b32 s%d, s%d, 13" % (S_R0, S_KVH))
        e("s_lshl_b32 s%d, s%d, 9" % (S_T1, S_WAVE))
        e("s_add_u32 s%d, s%d, s%d" % (S_R0, S_R0, S_T1))
        e("s_add_u32 s%d, s%d, 0x%x" % (S_R0, S_R0, base + OB))
        e("s_add_u32 s%d, s%d, 4096" % (S_R1, S_R0))
        g.red_addr(V_T + 2, V_T + 3)
        e("v_and_b32 v%d, 7, v%d" % (V_T + 3, V_LANE))
        e("v_lshlrev_b32 v%d, 3, v%d" % (V_T + 3, V_T + 3))
        e("s_lshl_b32 s%d, s%d, 11" % (S_P0, S_KVH))
        e("s_lshl_b32 s%d, s%d, 6" % (S_T1, S_C))
        e("s_add_u32 s%d, s%d, s%d" % (S_P0, S_P0, S_T1))
        e("s_add_u32 s%d, s%d, 0x%x" % (S_P0, S_P0, base + P1))

        def mkob(v):
            return lambda: g.vmem("buffer_load_dwordx4 %s, v%d, %s, s%d offen offset:%d sc1" % (vr(og[v], 4), V_T + 4, srd(S_WS), S_R0 if v < 2 else S_R1, 2048 * (v & 1)), counted=False)
        def mkobl(v):
            return lambda: g.vmem("buffer_load_dwordx4 %s, v%d, %s, s%d offen offset:%d sc1" % (vr(og[v], 4), V_T + 4, srd(S_WS), S_XO if v < 2 else S_XO + 1, 2048 * (v & 1)), counted=False)
        if cfg.LOC:
            e("s_add_u32 s%d, s%d, 0x%x" % (S_XO, S_R0, OBL - OB))
            e("s_add_u32 s%d, s%d, 0x%x" % (S_XO + 1, S_R1, OBL - OB))
        g.poll([(mkob(v), [og[v] + i for i in range(4)]) for v in range(4)], V_T, "ob", cfg.P_OB,
               local=[mkobl(v) for v in range(4)] if cfg.LOC else None, deferred=ob_global)
        for k in (0, 2):
            e("v_pk_add_f32 %s, %s, %s" % (vr(og[0] + k, 2), vr(og[0] + k, 2), vr(og[1] + k, 2)))
            e("v_pk_add_f32 %s, %s, %s" % (vr(og[2] + k, 2), vr(og[2] + k, 2), vr(og[3] + k, 2)))
        for k in (0, 2):
            e("v_pk_add_f32 %s, %s, %s" % (vr(og[0] + k, 2), vr(og[0] + k, 2), vr(og[2] + k, 2)))
        xo = V_B
        for k in (0, 2):
            e("v_cvt_pk_bf16_f32 v%d, v%d, v%d" % (V_T, og[0] + k, og[0] + k + 1))
            e("v_lshlrev_b32 v%d, 16, v%d" % (xo + k, V_T))
            e("v_and_b32 v%d, 0xffff0000, v%d" % (xo + k + 1, V_T))
        acc = V_O
        g.gemv8([V_WO + 4 * i for i in range(4)], [xo + i for i in range(4)], V_U, acc)
        g.reduce8_to_lds(acc, V_T + 2, L_RED + 256)
        g.sum4_pairs(V_U, V_O, V_T + 3, L_RED + 256)
        e("v_min_u32 v%d, -2, v%d" % (V_U, V_U))
        e("v_min_u32 v%d, -2, v%d" % (V_U + 1, V_U + 1))
        wave0_store("buffer_store_dwordx2 %s, v%d, %s, s%d offen sc1" % (vr(V_U, 2), V_T + 3, srd(S_WS), S_P0), 8)
        if it == 0:
            lab = g.newlabel("clr1")
            e("s_cmp_ge_u32 s2, 224")
            e("s_cbranch_scc1 %s" % lab)
            for k in range(4):
                e("v_mov_b32 v%d, -1" % (SCR + k))
            e("v_lshlrev_b32 v%d, 4, v0" % (SCR + 4))
            e("s_mul_i32 s%d, s2, 12288" % S_T0)
            e("s_add_u32 s%d, s%d, 0x%x" % (S_T0, S_T0, ITS))
            for k in range(3):
                g.vmem("buffer_store_dwordx4 %s, v%d, %s, s%d offen sc1" % (vr(SCR, 4), SCR + 4, srd(S_WS), S_T0), counted=False)
                if k < 2:
                    e("s_add_u32 s%d, s%d, 4096" % (S_T0, S_T0))
            g.label(lab)
        g.stamp()
        if cfg.XEND2 == 3:
            e("s_endpgm")

        x_gather(base + P1, 8, cfg.P_X1)
        slot = x_to_lds_and_barrier()
        if it == 0 and cfg.PF:
            sv_we = st.we
            st.we = 0
            for u in range(127 - NVR - cfg.PF + 1, 127 - NVR + 1):
                g.throttle(1)
                st.load("V", u, Tile("v", V_Q), "")
            st.we = sv_we
        g.stamp()
        mine, t = V_B, V_U
        accg, accu = SCR, V_O
        e("v_and_b32 v%d, 15, v%d" % (V_T, V_LANE))
        e("v_lshlrev_b32 v%d, 3, v%d" % (V_T, V_T))
        e("ds_read_b64 %s, v%d offset:%d" % (vr(t, 2), V_T, L_ST + 128 * slot))
        e("v_lshrrev_b32 v%d, 2, v%d" % (V_T + 1, V_LANE))
        e("v_lshlrev_b32 v%d, 3, v%d" % (V_T + 1, V_T + 1))
        e("s_lshl_b32 s%d, s%d, 2" % (S_T0, S_KQ))
        e("s_add_u32 s%d, s%d, s%d" % (S_T0, S_T0, S_WAVE))
        e("s_lshl_b32 s%d, s%d, 7" % (S_T0, S_T0))
        e("v_add_u32 v%d, s%d, v%d" % (V_T + 1, S_T0, V_T + 1))
        e("ds_read_b64 %s, v%d offset:%d" % (vr(mine, 2), V_T + 1, L_XL))
        e("v_lshrrev_b32 v%d, 5, v%d" % (V_T + 2, V_LANE))
        e("v_lshlrev_b32 v%d, 7, v%d" % (V_T + 2, V_T + 2))
        e("v_and_b32 v%d, 3, v%d" % (V_T + 3, V_LANE))
        e("v_lshl_add_u32 v%d, v%d, 5, v%d" % (V_T + 2, V_T + 3, V_T + 2))
        e("v_bfe_u32 v%d, v%d, 4, 1" % (V_T + 3, V_LANE))
        e("v_lshl_add_u32 v%d, v%d, 4, v%d" % (V_T + 2, V_T + 3, V_T + 2))
        e("s_lshl_b32 s%d, s%d, 8" % (S_T0, S_WAVE))
        e("v_add_u32 v%d, s%d, v%d" % (V_T + 2, S_T0, V_T + 2))
        e("v_and_b32 v%d, 1, v%d" % (V_T + 3, V_LANE))
        e("v_lshlrev_b32 v%d, 7, v%d" % (V_T + 3, V_T + 3))
        e("v_lshrrev_b32 v%d, 1, v%d" % (V_T + 4, V_LANE))
        e("v_lshl_add_u32 v%d, v%d, 2, v%d" % (V_T + 3, V_T + 4, V_T + 3))
        e("v_lshlrev_b32 v%d, 2, v%d" % (V_T + 4, V_LANE))
        e("s_mul_i32 s%d, s%d, 14336" % (S_P0, S_KQ))
        e("s_lshl_b32 s%d, s%d, 8" % (S_T0, S_CB))
        e("s_add_u32 s%d, s%d, s%d" % (S_P0, S_P0, S_T0))
        e("s_add_u32 s%d, s%d, 0x%x" % (S_P0, S_P0, base + GU))
        g.lgkm0()
        ln_finish(slot, mine, 2, t)
        g.gemv8([W13, W13 + 4], [mine, mine + 1], V_B + 2, accg)
        g.gemv8([W13 + 8, W13 + 12], [mine, mine + 1], V_B + 2, accu)
        g.nop(3)
        for j in range(8):
            e("v_permlane32_swap_b32 v%d, v%d" % (accg + j, accu + j))
        for j in range(0, 8, 2):
            e("v_pk_add_f32 %s, %s, %s" % (vr(accg + j, 2), vr(accg + j, 2), vr(accu + j, 2)))
        g.nop(1)
        for j in range(4):
            e("v_permlane16_swap_b32 v%d, v%d" % (accg + j, accg + j + 4))
        g.nop(1)
        for j in range(0, 4, 2):
            e("v_pk_add_f32 %s, %s, %s" % (vr(accg + j, 2), vr(accg + j, 2), vr(accg + j + 4, 2)))
        g.nop(1)
        g.ror_red([accg + j for j in range(4)], [8, 4], "v_add_f32")
        e("ds_write_b128 v%d, %s offset:%d" % (V_T + 2, vr(accg, 4), L_GU))
        g.lgkm0()
        e("s_barrier")
        for w in range(4):
            e("ds_read_b32 v%d, v%d offset:%d" % (V_O + w, V_T + 3, L_GU + 256 * w))
        g.lgkm0()
        e("v_pk_add_f32 %s, %s, %s" % (vr(V_O, 2), vr(V_O, 2), vr(V_O + 2, 2)))
        e("v_add_f32 v%d, v%d, v%d" % (V_O, V_O, V_O + 1))
        e("v_min_u32 v%d, -2, v%d" % (V_O, V_O))
        wave0_store("buffer_store_dword v%d, v%d, %s, s%d offen sc1" % (V_O, V_T + 4, srd(S_WS), S_P0), 64,
                    "s_cmp_ge_u32 s%d, 28" % S_C)
        g.stamp()

        hg, acc = V_B, V_O
        gu = [SCR, SCR + 4, V_U, V_U + 4]
        e("v_lshrrev_b32 v%d, 1, v%d" % (V_T + 4, V_LANE))
        e("v_lshlrev_b32 v%d, 4, v%d" % (V_T + 4, V_T + 4))
        e("s_lshl_b32 s%d, s%d, 11" % (S_R0, S_KSG))
        e("s_lshl_b32 s%d, s%d, 9" % (S_T1, S_WAVE))
        e("s_add_u32 s%d, s%d, s%d" % (S_R0, S_R0, S_T1))
        e("s_add_u32 s%d, s%d, 0x%x" % (S_XO, S_R0, base + GU))
        for k in range(1, 4):
            e("s_add_u32 s%d, s%d, 14336" % (S_XO + k, S_XO + k - 1))
        g.red_addr(V_T + 2, V_T + 3)
        e("v_and_b32 v%d, 7, v%d" % (V_T + 3, V_LANE))
        e("v_lshlrev_b32 v%d, 3, v%d" % (V_T + 3, V_T + 3))
        e("s_lshl_b32 s%d, s%d, 11" % (S_P0, S_KS))
        e("s_lshl_b32 s%d, s%d, 6" % (S_T1, S_CN))
        e("s_add_u32 s%d, s%d, s%d" % (S_P0, S_P0, S_T1))
        e("s_add_u32 s%d, s%d, 0x%x" % (S_P0, S_P0, base + P2))

        def mkgu(k):
            return lambda: g.vmem("buffer_load_dwordx4 %s, v%d, %s, s%d offen sc1" % (vr(gu[k], 4), V_T + 4, srd(S_WS), S_XO + k), counted=False)
        g.poll([(mkgu(k), [gu[k] + i for i in range(4)]) for k in range(4)], V_T, "hb", cfg.P_GU)
        for k in (0, 2):
            e("v_pk_add_f32 %s, %s, %s" % (vr(gu[0] + k, 2), vr(gu[0] + k, 2), vr(gu[1] + k, 2)))
            e("v_pk_add_f32 %s, %s, %s" % (vr(gu[2] + k, 2), vr(gu[2] + k, 2), vr(gu[3] + k, 2)))
        for k in (0, 2):
            e("v_pk_add_f32 %s, %s, %s" % (vr(gu[0] + k, 2), vr(gu[0] + k, 2), vr(gu[2] + k, 2)))
        G0, U0, G1, U1, ta, tb = SCR, SCR + 1, SCR + 2, SCR + 3, V_U, V_U + 1
        e("v_cvt_pk_bf16_f32 v%d, v%d, v%d" % (ta, G0, U0))
        e("v_cvt_pk_bf16_f32 v%d, v%d, v%d" % (tb, G1, U1))
        e("v_lshlrev_b32 v%d, 16, v%d" % (G0, ta))
        e("v_lshlrev_b32 v%d, 16, v%d" % (G1, tb))
        e("v_and_b32 v%d, 0xffff0000, v%d" % (U0, ta))
        e("v_and_b32 v%d, 0xffff0000, v%d" % (U1, tb))
        e("v_mul_f32 v%d, 0x%x, v%d" % (ta, f32bits(-LOG2E), G0))
        e("v_mul_f32 v%d, 0x%x, v%d" % (tb, f32bits(-LOG2E), G1))
        e("v_exp_f32 v%d, v%d" % (ta, ta))
        e("v_exp_f32 v%d, v%d" % (tb, tb))
        g.nop(1)
        e("v_add_f32 v%d, 1.0, v%d" % (ta, ta))
        e("v_add_f32 v%d, 1.0, v%d" % (tb, tb))
        e("v_rcp_f32 v%d, v%d" % (ta, ta))
        e("v_rcp_f32 v%d, v%d" % (tb, tb))
        g.nop(1)
        e("v_mul_f32 v%d, v%d, v%d" % (G0, G0, ta))
        e("v_mul_f32 v%d, v%d, v%d" % (G1, G1, tb))
        e("v_cvt_pk_bf16_f32 v%d, v%d, v%d" % (ta, G0, G1))
        e("v_lshlrev_b32 v%d, 16, v%d" % (G0, ta))
        e("v_and_b32 v%d, 0xffff0000, v%d" % (G1, ta))
        e("v_mul_f32 v%d, v%d, v%d" % (G0, G0, U0))
        e("v_mul_f32 v%d, v%d, v%d" % (G1, G1, U1))
        e("v_cvt_pk_bf16_f32 v%d, v%d, v%d" % (ta, G0, G1))
        e("v_lshlrev_b32 v%d, 16, v%d" % (hg, ta))
        e("v_and_b32 v%d, 0xffff0000, v%d" % (hg + 1, ta))
        g.gemv8([W2R, W2R + 4], [hg, hg + 1], V_B + 2, acc)
        g.reduce8_to_lds(acc, V_T + 2, L_RED + 512)
        g.sum4_pairs(V_U, V_O, V_T + 3, L_RED + 512)
        e("v_min_u32 v%d, -2, v%d" % (V_U, V_U))
        e("v_min_u32 v%d, -2, v%d" % (V_U + 1, V_U + 1))
        wave0_store("buffer_store_dwordx2 %s, v%d, %s, s%d offen sc1" % (vr(V_U, 2), V_T + 3, srd(S_WS), S_P0), 8,
                    "s_cmp_ge_u32 s%d, 7" % S_KS)
        g.stamp()

    LAG = 2
    ck = {"pos": None, "idx": None}

    def checkpoint(cur, last=False):
        if not cfg.DYN:
            return
        if ck["pos"] is not None:
            g.wait_side(ck["pos"])
            e("s_bitset0_b32 s%d, 4" % S_XCC)
            if not last:
                lab = g.newlabel("ck")
                e("v_cmp_lt_i32 vcc, 0x%x, v%d" % (ck["idx"] + cfg.DTH + 0x0, V_T + 5))
                e("s_bcnt1_i32_b32 s%d, vcc_lo" % S_T0)
                if cfg.DCG:
                    e("s_bcnt1_i32_b32 s%d, vcc_hi" % S_T1)
                    e("s_cmp_ge_u32 s%d, %d" % (S_T1, 4 * cfg.DCG))
                    e("s_cselect_b32 s%d, 32, s%d" % (S_T0, S_T0))
                e("s_cmp_lt_u32 s%d, %d" % (S_T0, cfg.DCN))
                e("s_cbranch_scc1 %s" % lab)
                e("s_bitset1_b32 s%d, 4" % S_XCC)
                g.label(lab)
        if last:
            st.dyn = False
            ck["pos"] = None
            return
        e("v_and_b32 v%d, 31, v%d" % (V_T + 5, V_LANE))
        e("v_lshl_add_u32 v%d, v%d, 2, s%d" % (V_T + 5, V_T + 5, S_PRL))
        if cfg.DCG:
            e("v_and_b32 v%d, 7, v%d" % (V_T + 4, V_LANE))
            e("v_lshlrev_b32 v%d, 2, v%d" % (V_T + 4, V_T + 4))
            e("v_add_u32 v%d, 0x%x, v%d" % (V_T + 4, PRG + 1024, V_T + 4))
            e("v_cndmask_b32 v%d, v%d, v%d, s[%d:%d]" % (V_T + 5, V_T + 5, V_T + 4, S_HI, S_HI + 1))
        e("v_mov_b32 v%d, %s" % (V_T + 4, str(cur) if cur <= 64 else "0x%x" % cur))
        wave0_store("buffer_store_dword v%d, v%d, %s, s%d offen" % (V_T + 4, V_LANE, srd(S_WS), S_PRS), 1)
        if cfg.DCG:
            wave0_store("buffer_store_dword v%d, v%d, %s, s%d offen sc1" % (V_T + 4, V_LANE, srd(S_WS), S_PRG), 1,
                        "s_cmp_lg_u32 s%d, 5" % S_C)
        ck["pos"], ck["idx"] = g.vm, cur
        g.vmem("buffer_load_dword v%d, v%d, %s, 0 offen sc1" % (V_T + 5, V_T + 5, srd(S_WS)), counted=False)
        st.dyn = True

    if cfg.DYN:
        e("s_lshl_b32 s%d, s%d, 7" % (S_PRL, S_KVH))
        e("s_add_u32 s%d, s%d, 0x%x" % (S_PRL, S_PRL, PRG))
        e("s_lshl_b32 s%d, s%d, 2" % (S_PRS, S_C))
        e("s_add_u32 s%d, s%d, s%d" % (S_PRS, S_PRS, S_PRL))
        e("s_lshl_b32 s%d, s%d, 2" % (S_PRG, S_KVH))
        e("s_add_u32 s%d, s%d, 0x%x" % (S_PRG, S_PRG, PRG + 1024))
        e("s_mov_b32 s%d, 0" % S_HI)
        e("s_mov_b32 s%d, -1" % (S_HI + 1))
    nextck = [0]

    def maybe_ck(cur=None, end=None):
        if cur is None:
            cur, end = state["issued"], cfg.DEND
        if cfg.DYN and cur >= nextck[0] and cur < end:
            checkpoint(cur)
            nextck[0] = cur + cfg.DSTEP
        elif cfg.DYN and cur >= end and st.dyn:
            checkpoint(cur, last=True)
    wpieces = []
    if cfg.WPOS == 2:
        keepL, keepvm, keepdone = g.L, g.vm, g.vm_done
        g.L, g.vm, g.vm_done = [], 0, 0
        load_wo(V_WO, V_T)
        load_w13(V_W13, V_T)
        load_w2(V_W2, V_T)
        cur = []
        for ln in g.L:
            cur.append(ln)
            if "buffer_load" in ln:
                wpieces.append(cur)
                cur = []
        assert not cur and len(wpieces) == 10
        g.L, g.vm, g.vm_done = keepL, keepvm, keepdone
    for t in range(128 + LAG):
        if t < 128:
            issue_upto(cfg.DEPTH1)
            g.wait_vm(seqs[t])
            tile, _k = dest[t]
            qk_mfma(t, tile, t)
            if t < NKL and not cfg.XNODS:
                e("ds_write_b128 v%d, %s offset:%d" % (V_LT, tile.r(), t * 1024))
            consumed(t)
            if cfg.WPOS == 5 and t == 8: load_wo(V_WO, V_T)
            if cfg.WPOS == 1:
                if t == 8: load_wo(V_WO, V_T)
                if t == 20: load_w13(V_W13, V_T)
                if t == 32: load_w2(V_W2, V_T)
            if cfg.WPOS == 2 and t >= cfg.W0 and (t - cfg.W0) % cfg.WSP == 0 and wpieces:
                g.throttle(1)
                for ln in wpieces.pop(0):
                    g.L.append(ln)
                g.vm += 1
            if t == cfg.CLRI:
                e("v_mov_b32 v%d, 0" % (V_U + 5))
                clrq = g.vm
                clr_issue(False)
            if t == cfg.CLRW:
                clr_wait(clrq)
            if t == 116:
                if not cfg.STAMP:
                    pool.extend(utiles)
                else:
                    pool.append(utiles[0])
            issue_upto(cfg.DEPTH1)
            if t >= 36:
                maybe_ck()
        else:
            g.nop(4)
        if t - LAG >= 0:
            qk_adds(t - LAG, t - LAG)
        else:
            g.nop(3)
    for x in dtiles:
        release(x)
    issue_upto(cfg.DEPTH1)
    g.stamp()
    softmax(0)
    g.lgkm0()
    g.stamp()

    def v_side_jobs(n, it, jobs):
        if n == 104:
            ml_addr(it)
            for k in range(8):
                e("v_mov_b32 v%d, -1" % (V_U + k))
            jobs["ml"] = g.vm
            ml_issue(False)
        if n == 120:
            ml_try_check(jobs["ml"])
            rec_addr_pre(it, V_U + 2)

    jobs = {}
    pv_b(0, 0)
    for u in range(128):
        i = 128 + u
        if u + 1 < 128:
            pv_b(u + 1, (u + 1) & 1)
        else:
            g.nop(2)
        g.wait_vm(seqs[i])
        tile, _k = dest[i]
        pv_mfma(tile, u & 1)
        if u == 40:
            for x in utiles:
                retire.add(id(x))
            pool[:] = [x for x in pool if id(x) not in retire]
        consumed(i)
        if u % 16 == 15 and u < 112:
            release(ytiles[u // 16])
        issue_upto(cfg.DEPTH1V)
        maybe_ck()
        vres[u] = tile
        if u == 104:
            assert all(id(dest[j][0]) not in retire for j in range(i + 1, state["issued"]))
        v_side_jobs(u, 0, jobs)
    g.stamp()
    if cfg.XEND:
        g.stamp()
        e("s_endpgm")
    pfn = [127 - NVR - cfg.PF0]

    def shadow(name):
        if name in ("a1", "q1") or not cfg.PFS:
            return
        sv_we = st.we
        st.we = 0
        for _ in range(cfg.PFS):
            st.load("V", pfn[0], Tile("v", V_Q), "")
            pfn[0] -= 1
        st.we = sv_we
    g.shadow = shadow
    chain(0, V_W13, V_W2, V_Y)

    if cfg.LOC and cfg.LWARM:
        q_pub_addr(1)
        e("s_add_u32 s%d, s%d, 0x%x" % (S_T0, S_P0, QBL - QB))
        e("v_mov_b32 v%d, 0" % (V_B + 1))
        g.vmem("buffer_load_dword v%d, v%d, %s, s%d offen sc1" % (V_B, V_B + 1, srd(S_WS), S_T0), counted=False)
    x_gather(P2, 7, cfg.P_X2)
    slot = x_to_lds_and_barrier()
    q_stage_compute(slot, V_WQ, V_Y)
    q_pub_addr(1)
    if cfg.LOC:
        e("s_add_u32 s%d, s%d, 0x%x" % (S_XO, S_P0, QBL - QB))
        wave0_store("buffer_store_dword v%d, v%d, %s, s%d offen" % (V_U + 2, V_U + 3, srd(S_WS), S_XO), 8)
    else:
        q_publish()
    q_gather_addr(1, V_T + 4)
    e("s_add_u32 s%d, s%d, 0x%x" % (S_XO, S_R0, QBL - QB))
    g.poll([(lambda: q_gather_issue(V_T + 4), [V_Q + i for i in range(4)])], V_T, "q1", cfg.P_Q,
           local=[lambda: g.vmem("buffer_load_dwordx4 %s, v%d, %s, s%d offen sc1" % (vr(V_Q, 4), V_T + 4, srd(S_WS), S_XO), counted=False)] if cfg.LOC else None, deferred=q_publish)
    g.stamp()

    st.we = cfg.WE2
    st.p1 = False
    st.wo = cfg.WO2
    g.shadow = None
    resident_v = list(range(127, 127 - NVR, -1))
    vloads = list(range(127 - NVR, -1, -1))
    free, vd, vs = [], {}, {}
    st2 = {"issued": 0, "consumed": 0}

    def issue2(maxn=1000):
        while maxn > 0 and st2["issued"] < len(vloads) and free and st2["issued"] - st2["consumed"] < cfg.DEPTH2:
            maxn -= 1
            u = vloads[st2["issued"]]
            tile = free.pop(0)
            g.throttle(1)
            vs[u] = st.load("V", u, tile, "" if (u >= cfg.VDEF and vdef(u)) else cfg.FV2)
            vd[u] = tile
            st2["issued"] += 1
    NLR = 4
    korder = list(range(112, 128)) + list(range(NKL, 112)) + list(range(NKL))
    if cfg.PARK:
        dring[0] = [V_U, V_O, V_U + 4, V_O + 4]
    ldsring = [kslot(t) for t in korder[:NLR]]
    lds_issued = 0
    for n in range(128 + LAG):
        if n < 128:
            t = korder[n]
            if n < NKR:
                tile = kslot(t)
                qk_mfma(t, tile, n)
                if n >= NLR:
                    parked = [u for u in resident_v if any(vres[u] is y for y in ytiles)]
                    if parked:
                        u = parked[0]
                        src = vres[u]
                        for k in range(4):
                            if tile.kind == "a":
                                e("v_accvgpr_write_b32 a%d, v%d" % (tile.base + k, src.base + k))
                            else:
                                e("v_mov_b32 v%d, v%d" % (tile.base + k, src.base + k))
                        vres[u] = tile
                    else:
                        free.append(tile)
                    if n < cfg.KL0 or n % cfg.KLD == 0:
                        issue2(1)
                if n == NLR + 2:
                    for k in range(min(NLR, NKL)):
                        e("ds_read_b128 %s, v%d offset:%d" % (ldsring[k].r(), V_LT, k * 1024))
                    lds_issued = min(NLR, NKL)
            else:
                k = n - NKR
                tile = ldsring[k % NLR]
                e("s_waitcnt lgkmcnt(%d)" % (lds_issued - k - 1))
                qk_mfma(t, tile, n)
                if lds_issued < NKL:
                    e("ds_read_b128 %s, v%d offset:%d" % (tile.r(), V_LT, lds_issued * 1024))
                    lds_issued += 1
                if n % cfg.KLD == 0:
                    issue2(1)
        else:
            g.nop(4)
        if n - LAG >= 0:
            qk_adds(korder[n - LAG], n - LAG)
        else:
            g.nop(3)
    free += ldsring
    issue2(cfg.SML)
    g.stamp()
    softmax(1, lambda: issue2(1))
    g.lgkm0()
    g.stamp()
    order = resident_v + vloads
    jobs = {}
    pv_b(order[0], 0)
    for n, u in enumerate(order):
        if n + 1 < 128:
            pv_b(order[n + 1], (n + 1) & 1)
        else:
            g.nop(2)
        if u in vs:
            g.wait_vm(vs[u])
            tile = vd[u]
            st2["consumed"] += 1
        else:
            tile = vres[u]
        pv_mfma(tile, n & 1)
        free.append(tile)
        issue2()
        if cfg.DYN2:
            maybe_ck(256 + st2["issued"], 256 + cfg.DEND2)
        v_side_jobs(n, 1, jobs)
    g.stamp()
    chain(1, V_W13, V_W2, V_Y)

    if cfg.XPL:
        e("s_getreg_b32 s72, hwreg(HW_REG_XCC_ID)")
        e("s_and_b32 s72, s72, 7")
        e("s_and_b32 s73, s2, 7")
        e("s_cmp_eq_u32 s72, s73")
        e("s_cbranch_scc1 L_xpl_ok")
        e("s_memrealtime s[72:73]")
        g.lgkm0()
        e("s_add_u32 s74, s72, 4000")
        g.label("L_xpl")
        e("s_memrealtime s[76:77]")
        g.lgkm0()
        e("s_sub_u32 s78, s74, s76")
        e("s_cmp_gt_i32 s78, 0")
        e("s_cbranch_scc1 L_xpl")
        g.label("L_xpl_ok")
    def ldump():
        if not cfg.LSTAMP:
            return
        e("v_lshlrev_b32 v%d, 2, v0" % (V_T + 2))
        e("s_lshl_b32 s%d, s2, 10" % S_T0)
        e("s_add_u32 s%d, s%d, 0x%x" % (S_T0, S_T0, STAMP_OFF))
        e("buffer_store_dword v%d, v%d, %s, s%d offen" % (V_DS, V_T + 2, srd(S_WS), S_T0))
    if cfg.LSTAMP:
        e("v_writelane_b32 v%d, s%d, 21" % (V_DS, S_STAMP))
    ldump()
    e("s_cmp_lg_u32 s2, 0")
    e("s_cbranch_scc1 L_end")
    x_gather(ITS + P2, 7, cfg.P_XF)
    e("v_lshlrev_b32 v%d, 2, v0" % (V_T + 1))
    g.vmem("buffer_store_dword v%d, v%d, %s, 0 offen" % (V_T, V_T + 1, srd(S_OUT)))
    g.stamp()
    ldump()
    if cfg.DSTAMP:
        sel = [1, 2, 3, 4, 6, 7, 8, 10, 11, 12, 14, 16, 17, 18, 20, 21]
        e("v_mov_b32 v%d, 0" % (V_T + 1))
        for k, i in enumerate(sel):
            e("v_readlane_b32 s%d, v%d, %d" % (S_T0, V_DS, i))
            e("v_readlane_b32 s%d, v%d, 0" % (S_T1, V_DS))
            e("s_nop 3")
            e("s_sub_u32 s%d, s%d, s%d" % (S_T0, S_T0, S_T1))
            e("v_mov_b32 v%d, s%d" % (V_T, S_T0))
            e("s_cmp_lg_u32 s%d, 0" % S_WAVE)
            e("s_cbranch_scc1 L_ds%d" % k)
            e("buffer_store_dword v%d, v%d, %s, 0 offen offset:%d" % (V_T, V_T + 1, srd(S_DBG), 4 * k))
            g.label("L_ds%d" % k)
    if cfg.XDE:
        if cfg.XENC >= 0:
            e("v_readlane_b32 s72, v%d, %d" % (V_DS, cfg.XENC))
            e("s_nop 3")
        else:
            e("s_memrealtime s[72:73]")
            g.lgkm0()
        e("s_add_u32 s74, s72, %d" % (cfg.XDE * 100))
        g.label("L_xde")
        e("s_memrealtime s[76:77]")
        g.lgkm0()
        e("s_sub_u32 s78, s74, s76")
        e("s_cmp_gt_i32 s78, 0")
        e("s_cbranch_scc1 L_xde")
    g.label("L_end")
    e("s_endpgm")

    out.append("\n".join(g.L))
    out.append('.section .rodata,"a"\n.p2align 6\n.amdhsa_kernel %s' % KNAME)
    out.append("  .amdhsa_next_free_vgpr 512\n  .amdhsa_next_free_sgpr 102\n  .amdhsa_accum_offset 256\n"
               "  .amdhsa_group_segment_fixed_size 0\n  .amdhsa_kernarg_size 96\n  .amdhsa_user_sgpr_count 2\n"
               "  .amdhsa_user_sgpr_kernarg_segment_ptr 1\n  .amdhsa_system_sgpr_workgroup_id_x 1\n.end_amdhsa_kernel")
    return "\n".join(out) + "\n"


if __name__ == "__main__":
    cfg = Cfg()
    outp = "interleave_layers__gqa_block_cached__glu_gated_swiglu__decode.s"
    for a in sys.argv[1:]:
        if a.startswith("out="):
            outp = a[4:]
            continue
        k, v = a.split("=", 1)
        cur = getattr(cfg, k)
        if isinstance(cur, bool):
            v = v in ("1", "True", "true")
        elif isinstance(cur, int):
            v = int(v)
        setattr(cfg, k, v)
    s = generate(cfg)
    open(outp, "w").write(s)
    print("wrote", outp, len(s), "bytes", s.count("\n"), "lines")
```

```python
import sys, math, struct
from gen import HEADER, KNAME, f32bits, srd, vr, Tile, SCALE, LOG2E


class Cfg:
    NW = 144
    NL = 39
    DEPTH1 = 56
    DEPTH2 = 56
    DEPTH1V = 24
    FK1 = "nt"
    FV1 = "nt"
    FV2 = "nt"
    FW = ""
    STAMP = False
    STAMP2 = False
    SPIN = 2000000
    PRE = 14
    BK = 0
    IB = 8
    INA = 9
    IWIN = 3
    NOQ = False
    CLRI = 2
    CLRW = 35
    LWARM = False
    LSTAMP = False
    LOC = True
    NLOC = 40
    HDONE = 60
    XPL = False
    DYN = True
    DTH = -8
    DCN = 22
    DCG = 0
    DYN2 = False
    DEND2 = 108
    DSTEP = 8
    DEND = 232
    WS = 35
    VMOD = 0
    VMN = 1
    PFS = 0
    PF0 = 22
    W0 = 4
    WSP = 8
    WON = 0
    WOFF = 128
    WOFF2 = 0
    PF = 0
    XDS = 0
    XDE = 0
    XENC = -1
    IFIRST = 6
    P_A1 = 2
    P_OB = 14
    P_X1 = 16
    P_GU = 16
    P_X2 = 16
    P_Q = 14
    P_XF = 14
    PARK = True
    PGAP = 0
    KLD = 1
    KL0 = 0
    SML = 1000
    WO = 55
    WE = 50
    WE2 = 50
    WO2 = 0
    KX = 0
    WPOS = 1
    DSTAMP = False
    VDEF = 0
    XW = ""
    XEND = False
    XEND2 = 0
    VBAR = True
    XNOW = False
    XNOSM = False
    XNODS = False
    XNOQK = False
    XNOPV = False
    XNOPVB = False
    NOCLR = False
    IUP = 3
    IDLY = 3


ITS = 0x280000
QB, OB, P1, QBL, P2, RML, RO = 0x0, 0x2000, 0x12000, 0x16000, 0x18000, 0x1C000, 0x48000
OBL = 0x38000
GUL = 0x250000
STAMP_OFF = 0x800000
QB0 = 0x600000
PRG = 0x34000
GU = 0x24000
L_XL = 0
L_RED = 2048
L_ST = 2816
L_GU = 3072
L_TILES = 4096

S_K, S_V, S_WQ, S_WO, S_W1, S_W3, S_W2, S_X, S_OUT, S_DBG, S_WS = [8 + 4 * i for i in range(11)]
S_WAVE, S_KVH, S_C, S_T0, S_T1, S_T2, S_SPIN, S_SOFF = 52, 53, 54, 55, 56, 57, 58, 59
S_EX = 60
S_CB, S_KS, S_CN = 62, 63, 64
S_R0, S_R1 = 65, 66
S_STATE = 67
S_STAMP = 68
S_PIV = 70
S_KSG = 71
S_SC = 96
S_P0 = 97
S_MLOK = 98
S_XCC = 99
S_KQ = 100
S_PRL = 92
S_PRS = 93
S_LOC = 95
S_HI = 94
S_PRG = 101
S_XO = 72
S_PM = 76

V_TID, V_LANE, V_KOFF, V_VOFF = 0, 1, 2, 3
V_Q = 4
V_O = 8
V_B = 16
V_M0, V_M1 = 20, 21
V_XR = 22
V_BP = 24
V_LT = 25
V_T = 26
V_Y = 32
V_D = 64
V_U = 80
V_DS = 23 + 0 if False else 3 * 0 + 255
V_WQ = 88
V_WO = 104
V_W13 = 120
V_W2 = 136


class G:
    def __init__(self, cfg):
        self.cfg = cfg
        self.L = []
        self.vm = 0
        self.vm_done = 0
        self.nlabel = 0
        self.nstamp = 0
        self.shadow = None

    def e(self, s):
        self.L.append("  " + s)

    def label(self, name):
        self.L.append(name + ":")

    def newlabel(self, p):
        self.nlabel += 1
        return "L_%s_%d" % (p, self.nlabel)

    def vmem(self, s, counted=True):
        self.e(s)
        if counted:
            self.vm += 1
            return self.vm - 1
        return None

    def wait_vm(self, seq):
        if seq < self.vm_done:
            return
        n = self.vm - seq - 1
        assert n <= 63, n
        self.e("s_waitcnt vmcnt(%d)" % n)
        self.vm_done = seq + 1

    def wait_side(self, pos):
        self.e("s_waitcnt vmcnt(%d)" % (self.vm - pos))

    def throttle(self, more, cap=56):
        if self.vm - self.vm_done + more > cap:
            self.wait_vm(self.vm + more - cap - 1)

    def lgkm0(self):
        self.e("s_waitcnt lgkmcnt(0)")

    def nop(self, n):
        while n > 0:
            k = min(n, 16)
            self.e("s_nop %d" % (k - 1))
            n -= k

    def stamp(self):
        if self.cfg.DSTAMP or self.cfg.LSTAMP:
            i = self.nstamp
            self.nstamp += 1
            if i < 23:
                if i: self.e("s_memrealtime s[%d:%d]" % (S_STAMP, S_STAMP + 1))
                self.lgkm0()
                self.e("v_writelane_b32 v%d, s%d, %d" % (V_DS, S_STAMP, i))
            return
        if not self.cfg.STAMP:
            return
        i = self.nstamp
        self.nstamp += 1
        if i: self.e("s_memrealtime s[%d:%d]" % (S_STAMP, S_STAMP + 1))
        self.lgkm0()
        self.e("v_mov_b32 v%d, s%d" % (V_U + 6, S_STAMP))
        self.e("s_lshl_b32 s%d, s2, 10" % S_T0)
        self.e("s_lshl_b32 s%d, s%d, 8" % (S_T1, S_WAVE))
        self.e("s_add_u32 s%d, s%d, s%d" % (S_T0, S_T0, S_T1))
        self.e("s_add_u32 s%d, s%d, 0x%x" % (S_T0, S_T0, STAMP_OFF + 4 * i))
        self.e("v_mov_b32 v%d, 0" % (V_U + 7))
        self.vmem("buffer_store_dword v%d, v%d, %s, s%d offen" % (V_U + 6, V_U + 7, srd(S_WS), S_T0), counted=False)

    def bf16r(self, x, t):
        self.e("v_cvt_pk_bf16_f32 v%d, v%d, v%d" % (t, x, x))
        self.e("v_lshlrev_b32 v%d, 16, v%d" % (x, t))

    def check_sent(self, regs, tmp):
        regs = list(regs)
        if len(regs) == 1:
            m = regs[0]
        else:
            if len(regs) >= 3:
                self.e("v_max3_u32 v%d, v%d, v%d, v%d" % (tmp, regs[0], regs[1], regs[2]))
                i = 3
            else:
                self.e("v_max_u32 v%d, v%d, v%d" % (tmp, regs[0], regs[1]))
                i = 2
            while i < len(regs):
                if len(regs) - i >= 2:
                    self.e("v_max3_u32 v%d, v%d, v%d, v%d" % (tmp, tmp, regs[i], regs[i + 1]))
                    i += 2
                else:
                    self.e("v_max_u32 v%d, v%d, v%d" % (tmp, tmp, regs[i]))
                    i += 1
            m = tmp
        self.e("v_cmp_eq_u32 vcc, -1, v%d" % m)

    def poll(self, loads, tmp, name, pre=0, after=None, local=None, deferred=None):
        lab = self.newlabel(name)
        ok = lab + "_ok"
        if local is not None:
            self.e("s_cmp_eq_u32 s%d, 0" % S_LOC)
            self.e("s_cbranch_scc1 %s_g" % lab)
            self.e("s_mov_b32 s%d, %d" % (S_T2, self.cfg.NLOC))
            self.label(lab + "_l")
            for fn in local:
                fn()
            self.e("s_waitcnt vmcnt(0)")
            self.check_sent([r for _, regs in loads for r in regs], tmp)
            self.e("s_cbranch_vccz %s_lok" % lab)
            self.e("s_sub_u32 s%d, s%d, 1" % (S_T2, S_T2))
            self.e("s_cmp_gt_i32 s%d, 0" % S_T2)
            self.e("s_cbranch_scc1 %s_l" % lab)
            self.label(lab + "_g")
            deferred()
        if self.shadow is not None and pre:
            self.shadow(name)
        if pre:
            self.e("s_sleep %d" % pre)
        if after is not None:
            for _, regs in loads:
                for r in regs:
                    self.e("v_mov_b32 v%d, -1" % r)
        for fn, regs in loads:
            fn()
        if after is not None:
            pos = self.vm
            after()
            self.wait_side(pos)
        else:
            self.e("s_waitcnt vmcnt(0)")
        self.check_sent([r for _, regs in loads for r in regs], tmp)
        self.e("s_cbranch_vccz %s" % ok)
        n = len(loads)
        M = [S_PM + 2 * j for j in range(n)]
        for j in range(n):
            self.e("s_mov_b64 s[%d:%d], -1" % (M[j], M[j] + 1))
        self.label(lab)
        for j, (fn, regs) in enumerate(loads):
            self.e("s_mov_b64 exec, s[%d:%d]" % (M[j], M[j] + 1))
            self.e("s_cbranch_execz %s_c%d" % (lab, j))
            self.check_sent(regs, tmp)
            self.e("s_mov_b64 s[%d:%d], vcc" % (M[j], M[j] + 1))
            self.label("%s_c%d" % (lab, j))
        self.e("s_mov_b64 s[%d:%d], s[%d:%d]" % (S_EX, S_EX + 1, M[0], M[0] + 1))
        for j in range(1, n):
            self.e("s_or_b64 s[%d:%d], s[%d:%d], s[%d:%d]" % (S_EX, S_EX + 1, S_EX, S_EX + 1, M[j], M[j] + 1))
        self.e("s_cmp_eq_u64 s[%d:%d], 0" % (S_EX, S_EX + 1))
        self.e("s_cbranch_scc1 %s_x" % lab)
        if self.cfg.BK:
            self.e("s_sleep %d" % self.cfg.BK)
        for j, (fn, regs) in enumerate(loads):
            self.e("s_mov_b64 exec, s[%d:%d]" % (M[j], M[j] + 1))
            self.e("s_cbranch_execz %s_l%d" % (lab, j))
            fn()
            self.label("%s_l%d" % (lab, j))
        self.e("s_waitcnt vmcnt(0)")
        self.e("s_sub_u32 s%d, s%d, 1" % (S_SPIN, S_SPIN))
        self.e("s_cmp_gt_i32 s%d, 0" % S_SPIN)
        self.e("s_cbranch_scc1 %s" % lab)
        self.label(lab + "_x")
        self.e("s_mov_b64 exec, -1")
        if local is not None:
            self.e("s_branch %s" % ok)
            self.label(lab + "_lok")
            deferred()
        self.label(ok)
        if after is None:
            self.vm_done = self.vm

    def allred_rows(self, x, t, op):
        self.e("v_mov_b32 v%d, v%d" % (t, x))
        self.nop(2)
        self.e("v_permlane32_swap_b32 v%d, v%d" % (x, t))
        self.nop(1)
        self.e("%s v%d, v%d, v%d" % (op, x, x, t))
        self.e("v_mov_b32 v%d, v%d" % (t, x))
        self.nop(2)
        self.e("v_permlane16_swap_b32 v%d, v%d" % (x, t))
        self.nop(1)
        self.e("%s v%d, v%d, v%d" % (op, x, x, t))

    def ror_red(self, regs, rors, op):
        for n in rors:
            pad = max(0, 3 - len(regs))
            self.nop(pad)
            for x in regs:
                self.e("%s_dpp v%d, v%d, v%d row_ror:%d row_mask:0xf bank_mask:0xf" % (op, x, x, x, n))

    def gemv8(self, wtiles, xregs, xlo, acc):
        for i, x in enumerate(xregs):
            self.e("v_lshrrev_b32 v%d, 16, v%d" % (xlo + i, x))
        for i, (w, x) in enumerate(zip(wtiles, xregs)):
            for d in range(4):
                if i == 0:
                    self.e("v_dot2_f32_bf16 v%d, v%d, v%d, 0" % (acc + 2 * d, w + d, xlo + i))
                    self.e("v_dot2_f32_bf16 v%d, v%d, v%d, 0" % (acc + 2 * d + 1, w + d, x))
                else:
                    self.e("v_dot2c_f32_bf16 v%d, v%d, v%d" % (acc + 2 * d, w + d, xlo + i))
                    self.e("v_dot2c_f32_bf16 v%d, v%d, v%d" % (acc + 2 * d + 1, w + d, x))

    def red_addr(self, taddr, t):
        self.e("v_and_b32 v%d, 1, v%d" % (taddr, V_LANE))
        self.e("v_lshlrev_b32 v%d, 5, v%d" % (taddr, taddr))
        self.e("v_lshrrev_b32 v%d, 4, v%d" % (t, V_LANE))
        self.e("v_lshl_add_u32 v%d, v%d, 3, v%d" % (taddr, t, taddr))
        self.e("s_lshl_b32 s%d, s%d, 6" % (S_T0, S_WAVE))
        self.e("v_add_u32 v%d, s%d, v%d" % (taddr, S_T0, taddr))

    def reduce8_to_lds(self, acc, taddr, red):
        self.nop(3)
        for j in range(4):
            self.e("v_permlane32_swap_b32 v%d, v%d" % (acc + j, acc + j + 4))
        self.nop(1)
        for j in range(4):
            self.e("v_add_f32 v%d, v%d, v%d" % (acc + j, acc + j, acc + j + 4))
        self.nop(1)
        for j in range(2):
            self.e("v_permlane16_swap_b32 v%d, v%d" % (acc + j, acc + j + 2))
        self.nop(1)
        for j in range(2):
            self.e("v_add_f32 v%d, v%d, v%d" % (acc + j, acc + j, acc + j + 2))
        self.ror_red([acc, acc + 1], [8, 4, 2], "v_add_f32")
        self.e("ds_write_b64 v%d, %s offset:%d" % (taddr, vr(acc, 2), red))
        self.lgkm0()
        self.e("s_barrier")

    def sum4_pairs(self, dst, tmp, taddr8, red):
        for w in range(4):
            self.e("ds_read_b64 %s, v%d offset:%d" % (vr(tmp + 2 * w, 2), taddr8, red + 64 * w))
        self.lgkm0()
        self.e("v_pk_add_f32 %s, %s, %s" % (vr(tmp, 2), vr(tmp, 2), vr(tmp + 2, 2)))
        self.e("v_pk_add_f32 %s, %s, %s" % (vr(tmp + 4, 2), vr(tmp + 4, 2), vr(tmp + 6, 2)))
        self.e("v_pk_add_f32 %s, %s, %s" % (vr(dst, 2), vr(tmp, 2), vr(tmp + 4, 2)))

    def exec_lanes(self, n):
        if n < 64:
            self.e("s_mov_b64 exec, 0x%x" % ((1 << n) - 1))

    def exec_all(self):
        self.e("s_mov_b64 exec, -1")


def generate(cfg):
    g = G(cfg)
    e = g.e
    NW, NL = cfg.NW, cfg.NL
    regtiles = [Tile("a", 4 * i) for i in range(64)] + [Tile("v", b) for b in range(NW, 252 if (cfg.DSTAMP or cfg.LSTAMP) else 256, 4)]
    NRT = len(regtiles)
    NKL = NL
    NKR = 128 - NKL
    NVR = NRT - NKR
    assert NVR >= 1
    slots = regtiles[:NKR]
    perm0 = regtiles[NKR:NKR + NVR]
    dtiles = [Tile("v", V_D + 4 * k) for k in range(4)]
    ytiles = [Tile("v", V_Y + 4 * k) for k in range(8)]
    if cfg.PARK:
        perm = ytiles[2:6] + dtiles + perm0 + [ytiles[6]]
    else:
        perm = perm0
    NVR = len(perm)
    def kslot(t):
        return slots[t] if t < NKR else slots[t - NKR]
    def vdef(u):
        if not cfg.VMOD or u >= 128 - NVR - 28:
            return True
        return (u % cfg.VMOD) >= cfg.VMN
    lds_bytes = L_TILES + 4 * NL * 1024
    assert lds_bytes <= 163840, lds_bytes

    out = [HEADER + "; @launch grid=(256,1,1) block=(256,1,1) lds=%d" % lds_bytes]
    out.append('.amdgcn_target "amdgcn-amd-amdhsa--gfx950"\n.text\n.globl %s\n.p2align 8\n.type %s,@function\n%s:' % (KNAME, KNAME, KNAME))

    e("s_cmp_ge_u32 s2, 256")
    e("s_cbranch_scc1 L_end")
    if cfg.STAMP or cfg.DSTAMP or cfg.LSTAMP:
        e("s_memrealtime s[%d:%d]" % (S_STAMP, S_STAMP + 1))
    if cfg.XDS:
        e("s_memrealtime s[72:73]")
        g.lgkm0()
        e("s_add_u32 s74, s72, %d" % (cfg.XDS * 100))
        g.label("L_xds")
        e("s_memrealtime s[76:77]")
        g.lgkm0()
        e("s_sub_u32 s78, s74, s76")
        e("s_cmp_gt_i32 s78, 0")
        e("s_cbranch_scc1 L_xds")
    e("s_load_dwordx16 s[72:87], s[0:1], 0")
    e("s_load_dwordx8 s[88:95], s[0:1], 64")
    e("v_and_b32 v%d, 63, v0" % V_LANE)
    e("v_lshrrev_b32 v%d, 6, v0" % V_T)
    e("s_nop 0")
    e("v_readfirstlane_b32 s%d, v%d" % (S_WAVE, V_T))
    e("s_and_b32 s%d, s2, 7" % S_KVH)
    if cfg.KX:
        e("s_xor_b32 s%d, s%d, %d" % (S_KVH, S_KVH, cfg.KX))
    e("s_lshr_b32 s%d, s2, 3" % S_C)
    e("s_mov_b32 s%d, %d" % (S_SPIN, cfg.SPIN))
    e("s_and_b32 s%d, s2, 7" % S_CB)
    e("s_mul_i32 s%d, s%d, 7" % (S_CB, S_CB))
    e("s_lshr_b32 s%d, s%d, 2" % (S_T0, S_C))
    e("s_add_u32 s%d, s%d, s%d" % (S_CB, S_CB, S_T0))
    e("s_and_b32 s%d, s%d, 3" % (S_KQ, S_C))
    e("s_and_b32 s%d, s2, 7" % S_KS)
    e("s_mov_b32 s%d, s%d" % (S_CN, S_C))
    e("s_mov_b32 s%d, 0x%x" % (S_SC, f32bits(SCALE)))
    e("s_mov_b32 s%d, 0" % S_STATE)
    e("s_getreg_b32 s%d, hwreg(HW_REG_XCC_ID)" % S_XCC)
    e("s_lshl_b32 s%d, s%d, 24" % (S_T0, S_KVH))
    e("s_lshl_b32 s%d, s%d, 19" % (S_T1, S_C))
    e("s_add_u32 s%d, s%d, s%d" % (S_T0, S_T0, S_T1))
    e("s_lshl_b32 s%d, s%d, 17" % (S_T1, S_WAVE))
    e("s_add_u32 s%d, s%d, s%d" % (S_T0, S_T0, S_T1))
    e("v_lshlrev_b32 v%d, 4, v%d" % (V_VOFF, V_LANE))
    e("s_mul_i32 s%d, s%d, %d" % (S_T1, S_WAVE, NL * 1024))
    e("s_add_u32 s%d, s%d, %d" % (S_T1, S_T1, L_TILES))
    e("v_add_u32 v%d, s%d, v%d" % (V_LT, S_T1, V_VOFF))
    e("v_add_u32 v%d, s%d, v%d" % (V_VOFF, S_T0, V_VOFF))
    e("v_bfe_u32 v%d, v%d, 2, 2" % (V_T, V_LANE))
    e("v_lshlrev_b32 v%d, 8, v%d" % (V_KOFF, V_T))
    e("v_lshrrev_b32 v%d, 4, v%d" % (V_T + 1, V_LANE))
    e("v_lshl_add_u32 v%d, v%d, 6, v%d" % (V_KOFF, V_T + 1, V_KOFF))
    e("v_and_b32 v%d, 3, v%d" % (V_T + 2, V_LANE))
    e("v_lshl_add_u32 v%d, v%d, 4, v%d" % (V_KOFF, V_T + 2, V_KOFF))
    e("v_add_u32 v%d, s%d, v%d" % (V_KOFF, S_T0, V_KOFF))
    e("v_and_b32 v%d, 48, v%d" % (V_BP, V_LANE))
    e("v_lshl_add_u32 v%d, v%d, 2, v%d" % (V_BP, V_T + 2, V_BP))
    e("v_add_u32 v%d, v%d, v%d" % (V_BP, V_BP, V_T))
    e("v_lshlrev_b32 v%d, 2, v%d" % (V_BP, V_BP))
    e("v_and_b32 v%d, 1, v%d" % (V_T + 3, V_LANE))
    e("v_lshlrev_b32 v%d, 4, v%d" % (V_T + 3, V_T + 3))
    e("v_mov_b32 v%d, 0xffff" % (V_T + 4))
    e("v_lshlrev_b32 v%d, v%d, v%d" % (V_T + 4, V_T + 3, V_T + 4))
    e("v_and_b32 v%d, 2, v%d" % (V_T + 3, V_LANE))
    e("v_cmp_eq_u32 vcc, 0, v%d" % (V_T + 3))
    e("v_mov_b32 v%d, 0" % (V_T + 5))
    e("s_nop 1")
    e("v_cndmask_b32 v%d, v%d, v%d, vcc" % (V_M0, V_T + 5, V_T + 4))
    e("v_cndmask_b32 v%d, v%d, v%d, vcc" % (V_M1, V_T + 4, V_T + 5))
    def build_srd(s_, src, nbytes):
        e("s_mov_b32 s%d, s%d" % (s_, src))
        e("s_and_b32 s%d, s%d, 0xffff" % (s_ + 1, src + 1))
        e("s_mov_b32 s%d, 0x%x" % (s_ + 2, nbytes))
        e("s_mov_b32 s%d, 0x00020000" % (s_ + 3))

    def load_wq(dst, taddr):
        if cfg.XNOW: return g.vm - 1
        e("v_lshrrev_b32 v%d, 1, v%d" % (taddr, V_LANE))
        e("v_lshlrev_b32 v%d, 15, v%d" % (taddr, taddr))
        e("v_and_b32 v%d, 1, v%d" % (taddr + 1, V_LANE))
        e("v_lshl_add_u32 v%d, v%d, 4, v%d" % (taddr, taddr + 1, taddr))
        e("s_lshl_b32 s%d, s%d, 20" % (S_T0, S_WAVE))
        e("s_lshl_b32 s%d, s%d, 10" % (S_T1, S_KVH))
        e("s_add_u32 s%d, s%d, s%d" % (S_T0, S_T0, S_T1))
        e("s_lshl_b32 s%d, s%d, 5" % (S_T1, S_C))
        e("s_add_u32 s%d, s%d, s%d" % (S_T0, S_T0, S_T1))
        g.throttle(4)
        seq = None
        for i in range(4):
            seq = g.vmem("buffer_load_dwordx4 %s, v%d, %s, s%d offen %s" % (vr(dst + 4 * i, 4), taddr, srd(S_WQ), S_T0, cfg.FW))
            if i < 3:
                e("s_add_u32 s%d, s%d, 8192" % (S_T0, S_T0))
        return seq

    def load_wo(dst, taddr):
        if cfg.XNOW: return g.vm - 1
        e("v_lshrrev_b32 v%d, 4, v%d" % (taddr, V_LANE))
        e("v_lshlrev_b32 v%d, 15, v%d" % (taddr, taddr))
        e("v_bfe_u32 v%d, v%d, 1, 3" % (taddr + 1, V_LANE))
        e("v_lshl_add_u32 v%d, v%d, 10, v%d" % (taddr, taddr + 1, taddr))
        e("v_and_b32 v%d, 1, v%d" % (taddr + 1, V_LANE))
        e("v_lshl_add_u32 v%d, v%d, 4, v%d" % (taddr, taddr + 1, taddr))
        e("s_lshl_b32 s%d, s%d, 17" % (S_T0, S_WAVE))
        e("s_lshl_b32 s%d, s%d, 19" % (S_T1, S_KVH))
        e("s_add_u32 s%d, s%d, s%d" % (S_T0, S_T0, S_T1))
        e("s_lshl_b32 s%d, s%d, 5" % (S_T1, S_C))
        e("s_add_u32 s%d, s%d, s%d" % (S_T0, S_T0, S_T1))
        g.throttle(4)
        for i in range(4):
            g.vmem("buffer_load_dwordx4 %s, v%d, %s, s%d offen %s" % (vr(dst + 4 * i, 4), taddr, srd(S_WO), S_T0, cfg.FW))
            if i < 3:
                e("s_add_u32 s%d, s%d, 8192" % (S_T0, S_T0))

    def load_w13(dst, taddr):
        if cfg.XNOW: return g.vm - 1
        e("v_lshrrev_b32 v%d, 2, v%d" % (taddr, V_LANE))
        e("v_mul_u32_u24 v%d, 7168, v%d" % (taddr, taddr))
        e("v_and_b32 v%d, 3, v%d" % (taddr + 1, V_LANE))
        e("v_lshl_add_u32 v%d, v%d, 4, v%d" % (taddr, taddr + 1, taddr))
        e("s_lshl_b32 s%d, s%d, 2" % (S_T0, S_KQ))
        e("s_add_u32 s%d, s%d, s%d" % (S_T0, S_T0, S_WAVE))
        e("s_mul_i32 s%d, s%d, %d" % (S_T0, S_T0, 32 * 3584))
        e("s_lshl_b32 s%d, s%d, 6" % (S_T1, S_CB))
        e("s_add_u32 s%d, s%d, s%d" % (S_T0, S_T0, S_T1))
        g.throttle(4)
        for m, sr in enumerate((S_W1, S_W3)):
            for i in range(2):
                g.vmem("buffer_load_dwordx4 %s, v%d, %s, s%d offen offset:%d %s" % (vr(dst + 8 * m + 4 * i, 4), taddr, srd(sr), S_T0, 3584 * i, cfg.FW))

    def load_w2(dst, taddr):
        if cfg.XNOW: return g.vm - 1
        e("v_lshrrev_b32 v%d, 1, v%d" % (taddr, V_LANE))
        e("v_lshlrev_b32 v%d, 11, v%d" % (taddr, taddr))
        e("v_and_b32 v%d, 1, v%d" % (taddr + 1, V_LANE))
        e("v_lshl_add_u32 v%d, v%d, 4, v%d" % (taddr, taddr + 1, taddr))
        e("s_mul_i32 s%d, s%d, %d" % (S_T0, S_WAVE, 56 * 1024))
        e("s_mul_i32 s%d, s%d, %d" % (S_T1, S_KS, 224 * 1024))
        e("s_add_u32 s%d, s%d, s%d" % (S_T0, S_T0, S_T1))
        e("s_lshl_b32 s%d, s%d, 5" % (S_T1, S_CN))
        e("s_add_u32 s%d, s%d, s%d" % (S_T0, S_T0, S_T1))
        g.throttle(2)
        for i in range(2):
            g.vmem("buffer_load_dwordx4 %s, v%d, %s, s%d offen offset:%d %s" % (vr(dst + 4 * i, 4), taddr, srd(S_W2), S_T0, 1024 * i, cfg.FW))

    class Stream:
        def __init__(self):
            self.cur_soff = None
            self.we = cfg.WE
            self.wo = cfg.WO
            self.n = 0
            self.p1 = True
            self.dyn = False

        def load(self, which, idx, tile, flags):
            base = (idx >> 2) * 4096
            if self.cur_soff != base:
                e("s_mov_b32 s%d, 0x%x" % (S_SOFF, base))
                self.cur_soff = base
            sr, vo = (S_K, V_KOFF) if which == "K" else (S_V, V_VOFF)
            if self.we and not (self.p1 and which == "K" and idx < cfg.WON) and not (self.p1 and which == "V" and idx >= cfg.WOFF) and not (not self.p1 and idx < cfg.WOFF2):
                lab = g.newlabel("th")
                lab2 = g.newlabel("td")
                if self.dyn:
                    e("s_bitcmp1_b32 s%d, 4" % S_XCC)
                    e("s_cbranch_scc1 %s" % lab2)
                e("s_bitcmp1_b32 s%d, 0" % S_XCC)
                e("s_cbranch_scc1 %s" % lab)
                self.n += 1
                frac = lambda w10: int((self.n * w10) // 10 - ((self.n - 1) * w10) // 10)
                e("s_waitcnt vmcnt(%d)" % frac(self.we))
                g.label(lab)
                if self.wo:
                    e("s_waitcnt vmcnt(%d)" % frac(self.wo))
                if self.dyn:
                    g.label(lab2)
            return g.vmem("buffer_load_dwordx4 %s, v%d, %s, s%d offen offset:%d %s" % (tile.r(), vo, srd(sr), S_SOFF, (idx & 3) * 1024, flags))

    st = Stream()
    stslot = [0]

    def x_to_lds_and_barrier():
        slot = stslot[0]
        stslot[0] ^= 1
        d0, d1, s1, s2 = V_T, V_T + 1, V_T + 2, V_T + 3
        e("v_lshlrev_b32 v%d, 3, v0" % (V_T + 4))
        e("ds_write_b64 v%d, %s offset:%d" % (V_T + 4, vr(V_XR, 2), L_XL))
        e("v_subrev_f32 v%d, s%d, v%d" % (d0, S_PIV, V_XR))
        e("v_subrev_f32 v%d, s%d, v%d" % (d1, S_PIV, V_XR + 1))
        e("v_add_f32 v%d, v%d, v%d" % (s1, d0, d1))
        e("v_mul_f32 v%d, v%d, v%d" % (s2, d0, d0))
        e("v_fmac_f32 v%d, v%d, v%d" % (s2, d1, d1))
        e("v_lshrrev_b32 v%d, 4, v0" % (V_T + 4))
        e("v_lshlrev_b32 v%d, 3, v%d" % (V_T + 4, V_T + 4))
        g.ror_red([s1, s2], [8, 4, 2, 1], "v_add_f32")
        e("ds_write_b64 v%d, %s offset:%d" % (V_T + 4, vr(s1, 2), L_ST + 128 * slot))
        g.lgkm0()
        e("s_barrier")
        return slot

    def ln_finish(slot, mine, nmine, t):
        s1, s2, a = t, t + 1, t + 2
        g.ror_red([s1, s2], [8, 4, 2, 1], "v_add_f32")
        inv = f32bits(1.0 / 512)
        e("v_mul_f32 v%d, 0x%x, v%d" % (s1, inv, s1))
        e("v_mul_f32 v%d, 0x%x, v%d" % (s2, inv, s2))
        e("v_fma_f32 v%d, -v%d, v%d, v%d" % (s2, s1, s1, s2))
        e("v_max_f32 v%d, 0, v%d" % (s2, s2))
        e("v_add_f32 v%d, s%d, v%d" % (s1, S_PIV, s1))
        e("v_cvt_pk_bf16_f32 v%d, v%d, v%d" % (a, s1, s2))
        e("v_lshlrev_b32 v%d, 16, v%d" % (s1, a))
        e("v_and_b32 v%d, 0xffff0000, v%d" % (s2, a))
        e("v_add_f32 v%d, 0x%x, v%d" % (s2, f32bits(1e-5), s2))
        g.bf16r(s2, a)
        e("v_sqrt_f32 v%d, v%d" % (s2, s2))
        for i in range(nmine):
            e("v_sub_f32 v%d, v%d, v%d" % (mine + i, mine + i, s1))
        g.bf16r(s2, a)
        e("v_rcp_f32 v%d, v%d" % (s2, s2))
        for i in range(0, nmine, 2):
            e("v_cvt_pk_bf16_f32 v%d, v%d, v%d" % (a, mine + i, mine + i + 1))
            e("v_lshlrev_b32 v%d, 16, v%d" % (mine + i, a))
            e("v_and_b32 v%d, 0xffff0000, v%d" % (mine + i + 1, a))
        for i in range(nmine):
            e("v_mul_f32 v%d, v%d, v%d" % (mine + i, mine + i, s2))
        for i in range(0, nmine, 2):
            e("v_cvt_pk_bf16_f32 v%d, v%d, v%d" % (a, mine + i, mine + i + 1))
            e("v_lshlrev_b32 v%d, 16, v%d" % (mine + i, a))
            e("v_and_b32 v%d, 0xffff0000, v%d" % (mine + i + 1, a))

    def q_stage_compute(slot, wregs, scr):
        mine, acc, t, xlo = V_B, V_O, V_U, scr
        e("v_and_b32 v%d, 15, v%d" % (V_T, V_LANE))
        e("v_lshlrev_b32 v%d, 3, v%d" % (V_T, V_T))
        e("ds_read_b64 %s, v%d offset:%d" % (vr(t, 2), V_T, L_ST + 128 * slot))
        e("v_lshrrev_b32 v%d, 1, v%d" % (V_T + 1, V_LANE))
        e("v_lshlrev_b32 v%d, 4, v%d" % (V_T + 1, V_T + 1))
        e("s_lshl_b32 s%d, s%d, 9" % (S_T0, S_WAVE))
        e("v_add_u32 v%d, s%d, v%d" % (V_T + 1, S_T0, V_T + 1))
        e("ds_read_b128 %s, v%d offset:%d" % (vr(mine, 4), V_T + 1, L_XL))
        g.red_addr(V_T + 2, V_T + 3)
        e("v_and_b32 v%d, 7, v%d" % (V_T + 3, V_LANE))
        e("v_lshlrev_b32 v%d, 3, v%d" % (V_T + 3, V_T + 3))
        g.lgkm0()
        ln_finish(slot, mine, 4, t)
        g.gemv8([wregs + 4 * i for i in range(4)], [mine + i for i in range(4)], xlo, acc)
        g.reduce8_to_lds(acc, V_T + 2, L_RED)
        g.sum4_pairs(V_U, V_O, V_T + 3, L_RED)
        e("v_cvt_pk_bf16_f32 v%d, v%d, v%d" % (V_U + 2, V_U, V_U + 1))
        e("v_min_u32 v%d, -2, v%d" % (V_U + 2, V_U + 2))
        e("v_lshlrev_b32 v%d, 2, v%d" % (V_U + 3, V_LANE))

    def q_pub_addr(it):
        e("s_lshl_b32 s%d, s%d, 10" % (S_P0, S_KVH))
        e("s_lshl_b32 s%d, s%d, 5" % (S_T1, S_C))
        e("s_add_u32 s%d, s%d, s%d" % (S_P0, S_P0, S_T1))
        e("s_add_u32 s%d, s%d, 0x%x" % (S_P0, S_P0, (ITS + QB if it else QB0)))

    def wave0_store(instr, nlanes, extra_skip=None):
        lab = g.newlabel("w0")
        e("s_cmp_lg_u32 s%d, 0" % S_WAVE)
        e("s_cbranch_scc1 %s" % lab)
        if extra_skip:
            e(extra_skip)
            e("s_cbranch_scc1 %s" % lab)
        g.exec_lanes(nlanes)
        g.vmem(instr, counted=False)
        g.exec_all()
        g.label(lab)

    def q_publish():
        wave0_store("buffer_store_dword v%d, v%d, %s, s%d offen sc1" % (V_U + 2, V_U + 3, srd(S_WS), S_P0), 8)

    def q_gather_addr(it, va):
        e("v_and_b32 v%d, 3, v%d" % (va, V_LANE))
        e("v_lshlrev_b32 v%d, 8, v%d" % (va, va))
        e("v_lshrrev_b32 v%d, 2, v%d" % (va + 1, V_LANE))
        e("v_lshl_add_u32 v%d, v%d, 4, v%d" % (va, va + 1, va))
        e("s_lshl_b32 s%d, s%d, 10" % (S_R0, S_KVH))
        e("s_add_u32 s%d, s%d, 0x%x" % (S_R0, S_R0, (ITS + QB if it else QB0)))

    def q_gather_issue(va):
        g.vmem("buffer_load_dwordx4 %s, v%d, %s, s%d offen sc1" % (vr(V_Q, 4), va, srd(S_WS), S_R0), counted=False)

    dring = [[V_D, V_D + 4, V_D + 8, V_D + 12]]

    def qk_mfma(t, tile, n):
        if cfg.XNOQK: return
        d = dring[0][n & 3]
        e("v_mfma_f32_16x16x32_bf16 %s, %s, %s, 0" % (vr(d, 4), tile.r(), vr(V_Q, 4)))

    def qk_adds(t, n):
        if cfg.XNOQK: return
        d = dring[0][n & 3]
        G_, c4 = t >> 2, t & 3
        y = V_Y + G_
        first = True
        for q in range(4):
            if q == c4:
                continue
            n = 4 * ((c4 - q) & 3)
            src1 = d + c4 if first else y
            e("v_add_f32_dpp v%d, v%d, v%d row_ror:%d row_mask:0xf bank_mask:0x%x" % (y, d + q, src1, n, 1 << c4))
            first = False

    def softmax(it, hook=None):
        if cfg.XNOSM: return
        m, l, t = V_T, V_T + 1, V_T + 2
        e("v_max3_f32 v%d, v%d, v%d, v%d" % (m, V_Y, V_Y + 1, V_Y + 2))
        for i in range(3, 31, 2):
            e("v_max3_f32 v%d, v%d, v%d, v%d" % (m, m, V_Y + i, V_Y + i + 1))
        e("v_max_f32 v%d, v%d, v%d" % (m, m, V_Y + 31))
        g.ror_red([m], [8, 4], "v_max_f32")
        g.allred_rows(m, t, "v_max_f32")
        e("v_mul_f32 v%d, s%d, v%d" % (t, S_SC, m))
        e("v_mov_b32 v%d, 0" % l)
        for i in range(32):
            e("v_fma_f32 v%d, v%d, s%d, -v%d" % (V_Y + i, V_Y + i, S_SC, t))
        for i in range(32):
            e("v_exp_f32 v%d, v%d" % (V_Y + i, V_Y + i))
            if hook and i % 8 == 0: hook()
        for i in range(32):
            e("v_add_f32 v%d, v%d, v%d" % (l, l, V_Y + i))
            e("v_cvt_pk_bf16_f32 v%d, v%d, v%d" % (V_Y + i, V_Y + i, V_Y + i))
            if hook and i % 8 == 0: hook()
        for i in range(32):
            e("ds_bpermute_b32 v%d, v%d, v%d" % (V_Y + i, V_BP, V_Y + i))
            if i % 8 == 7:
                g.lgkm0()
        g.ror_red([l], [8, 4], "v_add_f32")
        g.allred_rows(l, t, "v_add_f32")
        e("v_min_u32 v%d, -2, v%d" % (m, m))
        e("v_min_u32 v%d, -2, v%d" % (l, l))
        e("v_lshlrev_b32 v%d, 10, v%d" % (t, V_LANE))
        e("s_lshl_b32 s%d, s%d, 12" % (S_T0, S_KVH))
        e("s_lshl_b32 s%d, s%d, 5" % (S_T1, S_C))
        e("s_add_u32 s%d, s%d, s%d" % (S_T0, S_T0, S_T1))
        e("s_lshl_b32 s%d, s%d, 3" % (S_T1, S_WAVE))
        e("s_add_u32 s%d, s%d, s%d" % (S_T0, S_T0, S_T1))
        e("s_add_u32 s%d, s%d, 0x%x" % (S_T0, S_T0, it * ITS + RML))
        g.exec_lanes(4)
        g.vmem("buffer_store_dwordx2 %s, v%d, %s, s%d offen sc1" % (vr(m, 2), t, srd(S_WS), S_T0), counted=False)
        g.exec_all()
        for i in range(8):
            e("v_mov_b32 v%d, 0" % (V_O + i))

    def ml_addr(it):
        e("v_lshlrev_b32 v%d, 4, v%d" % (V_T, V_LANE))
        e("v_lshrrev_b32 v%d, 2, v%d" % (V_T + 1, V_LANE))
        e("v_lshlrev_b32 v%d, 4, v%d" % (V_T + 1, V_T + 1))
        e("s_lshl_b32 s%d, s%d, 8" % (S_T0, S_WAVE))
        e("v_add_u32 v%d, s%d, v%d" % (V_T + 1, S_T0, V_T + 1))
        e("s_lshl_b32 s%d, s%d, 12" % (S_R1, S_KVH))
        e("s_lshr_b32 s%d, s%d, 3" % (S_T0, S_C))
        e("s_lshl_b32 s%d, s%d, 10" % (S_T0, S_T0))
        e("s_add_u32 s%d, s%d, s%d" % (S_R1, S_R1, S_T0))
        e("s_add_u32 s%d, s%d, 0x%x" % (S_R1, S_R1, it * ITS + RML))

    def ml_issue(counted):
        g.vmem("buffer_load_dwordx4 %s, v%d, %s, s%d offen sc1" % (vr(V_U, 4), V_T, srd(S_WS), S_R1), counted=counted)
        return g.vmem("buffer_load_dwordx4 %s, v%d, %s, s%d offen sc1" % (vr(V_U + 4, 4), V_T + 1, srd(S_WS), S_R1), counted=counted)

    def ml_compute():
        M, Lr, t = V_T + 2, V_T + 3, V_T + 4
        e("v_max_f32 v%d, v%d, v%d" % (M, V_U, V_U + 2))
        g.ror_red([M], [8, 4, 2, 1], "v_max_f32")
        g.allred_rows(M, t, "v_max_f32")
        e("v_mul_f32 v%d, s%d, v%d" % (M, S_SC, M))
        for k in (0, 2, 4, 6):
            e("v_fma_f32 v%d, v%d, s%d, -v%d" % (V_U + k, V_U + k, S_SC, M))
        for k in (0, 2, 4, 6):
            e("v_exp_f32 v%d, v%d" % (V_U + k, V_U + k))
        g.nop(1)
        e("v_mul_f32 v%d, v%d, v%d" % (Lr, V_U, V_U + 1))
        e("v_fmac_f32 v%d, v%d, v%d" % (Lr, V_U + 2, V_U + 3))
        g.ror_red([Lr], [8, 4, 2, 1], "v_add_f32")
        g.allred_rows(Lr, t, "v_add_f32")
        e("v_rcp_f32 v%d, v%d" % (Lr, Lr))
        g.nop(1)
        e("v_mul_f32 v%d, v%d, v%d" % (V_U, V_U + 4, Lr))
        e("v_mul_f32 v%d, v%d, v%d" % (V_U + 1, V_U + 6, Lr))

    def ml_try_check(seq):
        lab = g.newlabel("mlt")
        g.wait_side(seq)
        g.check_sent([V_U + k for k in range(8)], V_T + 2)
        e("s_mov_b32 s%d, 0" % S_MLOK)
        e("s_cbranch_vccnz %s" % lab)
        ml_compute()
        e("s_mov_b32 s%d, 1" % S_MLOK)
        g.label(lab)

    def pv_b(u, slot):
        if cfg.XNOPVB: return
        G_, c4 = u >> 2, u & 3
        b = V_B + 2 * slot
        qp = "quad_perm:[%d,%d,%d,%d] row_mask:0xf bank_mask:0xf" % (c4, c4, c4, c4)
        e("v_and_b32_dpp v%d, v%d, v%d %s" % (b, V_Y + G_, V_M0, qp))
        e("v_and_b32_dpp v%d, v%d, v%d %s" % (b + 1, V_Y + G_, V_M1, qp))

    def pv_mfma(tile, slot):
        if cfg.XNOPV: return
        b = V_B + 2 * slot
        e("v_mfma_f32_16x16x16_bf16 %s, %s, %s, %s" % (vr(V_O, 4), tile.r(0, 2), vr(b, 2), vr(V_O, 4)))
        e("v_mfma_f32_16x16x16_bf16 %s, %s, %s, %s" % (vr(V_O + 4, 4), tile.r(2, 2), vr(b, 2), vr(V_O + 4, 4)))

    loads = [("K", t) for t in range(128)] + [("V", u) for u in range(128)]
    dest, seqs = {}, {}
    state = {"issued": 0, "consumed": 0}
    pool = []
    perm_free = [any(p is q for q in perm0) for p in perm]

    def release(tile):
        for k, p in enumerate(perm):
            if p is tile:
                perm_free[k] = True
                return
        pool.append(tile)
    retire = set()

    def issue_one():
        i = state["issued"]
        which, idx = loads[i]
        kind = None
        if which == "K":
            if idx >= NKR and state["consumed"] <= idx - NKR:
                return False
            tile = kslot(idx)
        else:
            if idx >= 128 - NVR:
                k = idx - (128 - NVR)
                if not perm_free[k]:
                    return False
                tile, kind = perm[k], ("perm", k)
            elif pool:
                tile, kind = pool.pop(0), ("pool", None)
            else:
                ks = [k for k in range(NVR) if perm_free[k]]
                if not ks or idx >= 128 - NVR - cfg.PGAP:
                    return False
                tile, kind = perm[ks[0]], ("perm", ks[0])
            if kind[0] == "perm":
                perm_free[kind[1]] = False
        g.throttle(1)
        seqs[i] = st.load(which, idx, tile, cfg.FK1 if which == "K" else ("" if (cfg.VDEF <= idx < 128 - NVR and vdef(idx)) else cfg.FV1))
        dest[i] = (tile, kind)
        state["issued"] += 1
        return True

    def issue_n(n):
        for _ in range(n):
            assert issue_one()

    def issue_upto(depth):
        while state["issued"] < len(loads) and state["issued"] - state["consumed"] < depth:
            if not issue_one():
                break

    def consumed(i):
        tile, kind = dest[i]
        if kind is not None:
            if kind[0] == "perm":
                perm_free[kind[1]] = True
            elif id(tile) not in retire:
                pool.append(tile)
        state["consumed"] = i + 1

    utiles = [Tile("v", V_U), Tile("v", V_U + 4)]

    g.lgkm0()
    build_srd(S_K, 74, 1 << 27)
    e("s_load_dword s%d, s[72:73], 0" % S_PIV)
    issue_n(cfg.IFIRST)
    for (s_, src, nbytes) in [(S_X, 72, 1024), (S_WQ, 78, 512 * 4096 * 2), (S_WS, 94, 1 << 29), (S_V, 76, 1 << 27),
                              (S_WO, 80, 4096 * 512 * 2), (S_W1, 84, 512 * 1792 * 2), (S_W3, 86, 512 * 1792 * 2),
                              (S_W2, 88, 1792 * 512 * 2), (S_OUT, 90, 1024), (S_DBG, 92, 256)]:
        build_srd(s_, src, nbytes)
    e("v_lshlrev_b32 v%d, 2, v0" % (V_U + 5))
    xseq = g.vmem("buffer_load_dword v%d, v%d, %s, 0 offen" % (V_XR, V_U + 5, srd(S_X)))
    for k in range(4):
        e("v_mov_b32 v%d, -1" % (V_U + k))
    e("v_lshlrev_b32 v%d, 4, v0" % (V_U + 4))
    e("s_mul_i32 s%d, s2, 10240" % S_T0)
    for k in range(2):
        g.vmem("buffer_store_dwordx4 %s, v%d, %s, s%d offen sc1" % (vr(V_U, 4), V_U + 4, srd(S_WS), S_T0), counted=False)
        e("s_add_u32 s%d, s%d, 4096" % (S_T0, S_T0))
    e("s_cmp_ge_u32 s%d, 2" % S_WAVE)
    e("s_cbranch_scc1 L_clr0")
    g.vmem("buffer_store_dwordx4 %s, v%d, %s, s%d offen sc1" % (vr(V_U, 4), V_U + 4, srd(S_WS), S_T0), counted=False)
    g.label("L_clr0")

    if cfg.XW:
        e("s_waitcnt vmcnt(0)")
        g.stamp()
        for nm, fn, r in (("q", load_wq, V_WQ), ("o", load_wo, V_WO), ("g", load_w13, V_W13), ("d", load_w2, V_W2)):
            if nm in cfg.XW:
                fn(r, V_T)
                if "s" in cfg.XW:
                    e("s_waitcnt vmcnt(0)")
                    g.stamp()
        e("s_waitcnt vmcnt(0)")
        g.stamp()
        e("s_endpgm")
    wqseq = load_wq(V_WQ, V_T)
    if cfg.WPOS == 0:
        load_wo(V_WO, V_T)
        load_w13(V_W13, V_T)
        load_w2(V_W2, V_T)
    IB = cfg.IB
    bseq = []

    def batch():
        if len(bseq) >= cfg.IWIN:
            g.wait_vm(bseq[len(bseq) - cfg.IWIN])
        issue_n(IB)
        bseq.append(g.vm - 1)

    for _ in range(cfg.IUP):
        issue_n(IB)
        bseq.append(g.vm - 1)
    g.wait_vm(wqseq)
    e("v_and_b32 v%d, 0xffff0000, v%d" % (V_XR + 1, V_XR))
    e("v_lshlrev_b32 v%d, 16, v%d" % (V_XR, V_XR))
    g.lgkm0()
    e("s_lshl_b32 s%d, s%d, 16" % (S_PIV, S_PIV))
    g.stamp()
    slot = x_to_lds_and_barrier()
    q_stage_compute(slot, V_WQ, V_Y)
    q_pub_addr(0)
    q_publish()
    if cfg.STAMP2: g.stamp()
    q_gather_addr(0, V_T + 4)
    e("v_and_b32 v%d, 7, v%d" % (V_T + 2, V_LANE))
    e("v_lshlrev_b32 v%d, 2, v%d" % (V_T + 2, V_T + 2))
    e("s_lshl_b32 s%d, s%d, 5" % (S_T2, S_KVH))
    e("s_add_u32 s%d, s%d, s%d" % (S_P0, S_T2, S_C))
    e("s_mov_b32 s%d, 0x01010101" % S_R1)
    e("v_mov_b32 v%d, 1" % (V_U + 4))
    e("v_mov_b32 v%d, 0" % (V_U + 5))
    batch()
    mark = g.vm - IB
    batch()
    g.wait_vm(mark)
    wave0_store("buffer_store_byte v%d, v%d, %s, s%d offen sc1" % (V_U + 4, V_U + 5, srd(S_DBG), S_P0), 1)
    for _ in range(cfg.IDLY):
        batch()

    if cfg.NOQ:
        e("s_mov_b32 s%d, 2" % S_STATE)

    def attempt(nb):
        la = g.newlabel("att")
        if nb and len(bseq) >= cfg.IWIN:
            g.wait_vm(bseq[len(bseq) - cfg.IWIN])
        e("s_cmp_eq_u32 s%d, 2" % S_STATE)
        e("s_cbranch_scc1 %s_k" % la)
        e("s_cmp_eq_u32 s%d, 1" % S_STATE)
        e("s_cbranch_scc1 %s_q" % la)
        e("v_mov_b32 v%d, 0" % (V_T + 3))
        g.vmem("buffer_load_dword v%d, v%d, %s, s%d offen sc1" % (V_T + 3, V_T + 2, srd(S_DBG), S_T2), counted=False)
        e("s_branch %s_k" % la)
        g.label(la + "_q")
        for k in range(4):
            e("v_mov_b32 v%d, -1" % (V_Q + k))
        q_gather_issue(V_T + 4)
        g.label(la + "_k")
        if nb:
            issue_n(nb)
            bseq.append(g.vm - 1)
        e("s_cmp_eq_u32 s%d, 2" % S_STATE)
        e("s_cbranch_scc1 %s_n" % la)
        e("s_waitcnt vmcnt(%d)" % nb)
        e("s_cmp_eq_u32 s%d, 1" % S_STATE)
        e("s_cbranch_scc1 %s_cq" % la)
        e("v_cmp_ne_u32 vcc, s%d, v%d" % (S_R1, V_T + 3))
        e("s_cbranch_vccnz %s_n" % la)
        e("s_mov_b32 s%d, 1" % S_STATE)
        e("s_branch %s_n" % la)
        g.label(la + "_cq")
        g.check_sent([V_Q + k for k in range(4)], V_T)
        e("s_cbranch_vccnz %s_n" % la)
        e("s_mov_b32 s%d, 2" % S_STATE)
        g.label(la + "_n")

    while state["issued"] + IB <= NKR:
        attempt(IB)
        if cfg.STAMP2:
            g.stamp()
            e("v_mov_b32 v%d, s%d" % (V_U + 6, S_STATE))
            g.vmem("buffer_store_dword v%d, v%d, %s, s%d offen offset:128" % (V_U + 6, V_U + 7, srd(S_WS), S_T0))
    lab = g.newlabel("fb")
    g.label(lab)
    e("s_cmp_eq_u32 s%d, 2" % S_STATE)
    e("s_cbranch_scc1 %s_done" % lab)
    e("s_sleep 4")
    attempt(0)
    e("s_sub_u32 s%d, s%d, 1" % (S_SPIN, S_SPIN))
    e("s_cmp_gt_i32 s%d, 0" % S_SPIN)
    e("s_cbranch_scc1 %s" % lab)
    g.label(lab + "_done")
    e("v_lshlrev_b32 v%d, 2, v%d" % (V_U + 4, V_LANE))
    e("s_mov_b32 s%d, 0x01010101" % S_STATE)
    g.stamp()

    def clr_issue(counted):
        return g.vmem("buffer_load_dword v%d, v%d, %s, 0 offen sc1" % (V_U + 5, V_U + 4, srd(S_DBG)), counted=counted)

    def clr_check():
        e("v_cmp_ne_u32 vcc, s%d, v%d" % (S_STATE, V_U + 5))

    def clr_wait(seq):
        lab = g.newlabel("clr")
        g.wait_side(seq)
        clr_check()
        e("s_cbranch_vccz %s_ok" % lab)
        g.label(lab)
        e("s_sleep 8")
        clr_issue(False)
        e("s_waitcnt vmcnt(0)")
        clr_check()
        e("s_cbranch_vccz %s_ok" % lab)
        e("s_sub_u32 s%d, s%d, 1" % (S_SPIN, S_SPIN))
        e("s_cmp_gt_i32 s%d, 0" % S_SPIN)
        e("s_cbranch_scc1 %s" % lab)
        g.label(lab + "_ok")

    vres = {}

    def x_gather(off, n, pre):
        regs = [V_O + 2 * k for k in range(4)] + [V_U + 2 * k for k in range(4)]
        e("v_lshlrev_b32 v%d, 3, v0" % (V_T + 4))

        for k in range(0, n, 2):
            e("s_mov_b32 s%d, 0x%x" % (S_XO + k // 2, off + 2048 * k))

        def mk(k):
            return lambda: g.vmem("buffer_load_dwordx2 %s, v%d, %s, s%d offen offset:%d sc1" % (vr(regs[k], 2), V_T + 4, srd(S_WS), S_XO + k // 2, 2048 * (k & 1)), counted=False)
        g.poll([(mk(k), [regs[k], regs[k] + 1]) for k in range(n)], V_T, "xg", pre)
        live = regs[:n]
        while len(live) > 1:
            nxt = []
            for a in range(0, len(live) - 1, 2):
                e("v_pk_add_f32 %s, %s, %s" % (vr(live[a], 2), vr(live[a], 2), vr(live[a + 1], 2)))
                nxt.append(live[a])
            if len(live) % 2:
                nxt.append(live[-1])
            live = nxt
        r = live[0]
        e("v_cvt_pk_bf16_f32 v%d, v%d, v%d" % (V_T, r, r + 1))
        e("v_lshlrev_b32 v%d, 16, v%d" % (r, V_T))
        e("v_and_b32 v%d, 0xffff0000, v%d" % (r + 1, V_T))
        e("v_pk_add_f32 %s, %s, %s" % (vr(V_XR, 2), vr(V_XR, 2), vr(r, 2)))
        e("v_cvt_pk_bf16_f32 v%d, v%d, v%d" % (V_T, V_XR, V_XR + 1))
        e("v_lshlrev_b32 v%d, 16, v%d" % (V_XR, V_T))
        e("v_and_b32 v%d, 0xffff0000, v%d" % (V_XR + 1, V_T))

    def rec_addr_pre(it, va):
        e("v_bfe_u32 v%d, v%d, 2, 2" % (va, V_LANE))
        e("v_lshlrev_b32 v%d, 16, v%d" % (va, va))
        e("v_lshrrev_b32 v%d, 4, v%d" % (va + 1, V_LANE))
        e("v_lshl_add_u32 v%d, v%d, 14, v%d" % (va, va + 1, va))
        e("v_and_b32 v%d, 3, v%d" % (va + 1, V_LANE))
        e("v_lshl_add_u32 v%d, v%d, 4, v%d" % (va, va + 1, va))
        e("s_lshl_b32 s%d, s%d, 18" % (S_P0, S_KVH))
        e("s_lshl_b32 s%d, s%d, 8" % (S_T1, S_C))
        e("s_add_u32 s%d, s%d, s%d" % (S_P0, S_P0, S_T1))
        e("s_lshl_b32 s%d, s%d, 6" % (S_T1, S_WAVE))
        e("s_add_u32 s%d, s%d, s%d" % (S_P0, S_P0, S_T1))
        e("s_add_u32 s%d, s%d, 0x%x" % (S_P0, S_P0, it * ITS + RO))

    def chain(it, W13, W2R, SCR):
        base = it * ITS
        va = V_U + 2
        g.nop(8)
        for k in range(8):
            e("v_min_u32 v%d, -2, v%d" % (V_O + k, V_O + k))
        e("s_add_u32 s%d, s%d, 8192" % (S_T0, S_P0))
        g.vmem("buffer_store_dwordx4 %s, v%d, %s, s%d offen sc1" % (vr(V_O, 4), va, srd(S_WS), S_P0))
        g.vmem("buffer_store_dwordx4 %s, v%d, %s, s%d offen sc1" % (vr(V_O + 4, 4), va, srd(S_WS), S_T0))
        g.stamp()
        if cfg.XEND2 == 1:
            e("s_endpgm")
        if cfg.WPOS == 4 and it == 0:
            load_wo(V_WO, V_T)
            load_w13(V_W13, V_T)
            load_w2(V_W2, V_T)
        if cfg.VBAR:
            e("s_barrier")
        if cfg.HDONE:
            done = 1000 * (it + 1)
            lab = g.newlabel("hd")
            e("v_mov_b32 v%d, 0x%x" % (V_T + 4, done))
            wave0_store("buffer_store_dword v%d, v%d, %s, s%d offen" % (V_T + 4, V_LANE, srd(S_WS), S_PRS), 1)
            e("v_and_b32 v%d, 31, v%d" % (V_T + 4, V_LANE))
            e("v_lshl_add_u32 v%d, v%d, 2, s%d" % (V_T + 4, V_T + 4, S_PRL))
            e("s_mov_b32 s%d, %d" % (S_T2, cfg.HDONE))
            e("s_mov_b32 s%d, 1" % S_LOC)
            g.label(lab)
            g.vmem("buffer_load_dword v%d, v%d, %s, 0 offen sc1" % (V_T + 5, V_T + 4, srd(S_WS)), counted=False)
            e("s_waitcnt vmcnt(0)")
            e("v_cmp_gt_i32 vcc, 0x%x, v%d" % (done, V_T + 5))
            e("s_cbranch_vccz %s_ok" % lab)
            e("s_sub_u32 s%d, s%d, 1" % (S_T2, S_T2))
            e("s_cmp_gt_i32 s%d, 0" % S_T2)
            e("s_cbranch_scc1 %s" % lab)
            e("s_mov_b32 s%d, 0" % S_LOC)
            g.label(lab + "_ok")
        if cfg.WPOS == 3 and it == 0:
            load_wo(V_WO, V_T)
            load_w13(V_W13, V_T)
            load_w2(V_W2, V_T)
        if cfg.WPOS == 5 and it == 0:
            load_w13(V_W13, V_T)
            load_w2(V_W2, V_T)
        lab = g.newlabel("mls")
        e("s_cmp_eq_u32 s%d, 1" % S_MLOK)
        e("s_cbranch_scc1 %s" % lab)
        sv = g.vm_done
        ml_addr(it)
        g.poll([(lambda: g.vmem("buffer_load_dwordx4 %s, v%d, %s, s%d offen sc1" % (vr(V_U, 4), V_T, srd(S_WS), S_R1), counted=False), [V_U + k for k in range(4)]),
                (lambda: g.vmem("buffer_load_dwordx4 %s, v%d, %s, s%d offen sc1" % (vr(V_U + 4, 4), V_T + 1, srd(S_WS), S_R1), counted=False), [V_U + 4 + k for k in range(4)])],
               V_T + 2, "ml")
        ml_compute()
        g.vm_done = sv
        g.label(lab)
        a1_after = None
        if cfg.WPOS == 6 and it == 0:
            def a1_after():
                load_wo(V_WO, V_T + 3)
                load_w13(V_W13, V_T + 3)
                load_w2(V_W2, V_T + 3)
        o0, o1 = SCR, SCR + 4
        e("v_lshrrev_b32 v%d, 2, v%d" % (V_T, V_LANE))
        e("v_lshlrev_b32 v%d, 7, v%d" % (V_T, V_T))
        e("v_and_b32 v%d, 3, v%d" % (V_T + 1, V_LANE))
        e("v_lshlrev_b32 v%d, 4, v%d" % (V_T + 1, V_T + 1))
        e("v_add_u32 v%d, v%d, v%d" % (V_T, V_T, V_T + 1))
        e("s_lshl_b32 s%d, s%d, 5" % (S_R0, S_KVH))
        e("s_add_u32 s%d, s%d, s%d" % (S_R0, S_R0, S_C))
        e("s_lshl_b32 s%d, s%d, 13" % (S_R0, S_R0))
        e("s_lshl_b32 s%d, s%d, 11" % (S_T0, S_WAVE))
        e("s_add_u32 s%d, s%d, s%d" % (S_R0, S_R0, S_T0))
        e("s_add_u32 s%d, s%d, 0x%x" % (S_R0, S_R0, base + RO))
        e("s_lshl_b32 s%d, s%d, 13" % (S_P0, S_KVH))
        e("s_add_u32 s%d, s%d, s%d" % (S_P0, S_P0, S_T0))
        e("s_lshl_b32 s%d, s%d, 6" % (S_T1, S_C))
        e("s_add_u32 s%d, s%d, s%d" % (S_P0, S_P0, S_T1))
        e("s_add_u32 s%d, s%d, 0x%x" % (S_P0, S_P0, base + OB))
        if cfg.LOC and cfg.LWARM:
            e("s_add_u32 s%d, s%d, 0x%x" % (S_T0, S_P0, OBL - OB))
            g.vmem("buffer_load_dword v%d, v%d, %s, s%d offen sc1" % (V_B, V_T + 1, srd(S_WS), S_T0), counted=False)

        g.poll([(lambda: g.vmem("buffer_load_dwordx4 %s, v%d, %s, s%d offen sc1" % (vr(o0, 4), V_T, srd(S_WS), S_R0), counted=False), [o0 + i for i in range(4)]),
                (lambda: g.vmem("buffer_load_dwordx4 %s, v%d, %s, s%d offen offset:64 sc1" % (vr(o1, 4), V_T, srd(S_WS), S_R0), counted=False), [o1 + i for i in range(4)])],
               V_T + 2, "a1", cfg.P_A1, a1_after)
        for k in range(4):
            e("v_mul_f32 v%d, v%d, v%d" % (o0 + k, V_U, o0 + k))
        for k in range(4):
            e("v_fmac_f32 v%d, v%d, v%d" % (o0 + k, V_U + 1, o1 + k))
        g.ror_red([o0 + k for k in range(4)], [8, 4], "v_add_f32")
        for k in range(4):
            e("v_mov_b32 v%d, v%d" % (o1 + k, o0 + k))
        for k in range(4):
            e("v_permlane32_swap_b32 v%d, v%d" % (o0 + k, o1 + k))
        for k in range(4):
            e("v_add_f32 v%d, v%d, v%d" % (o0 + k, o0 + k, o1 + k))
        for k in range(4):
            e("v_mov_b32 v%d, v%d" % (o1 + k, o0 + k))
        for k in range(4):
            e("v_permlane16_swap_b32 v%d, v%d" % (o0 + k, o1 + k))
        for k in range(4):
            e("v_add_f32 v%d, v%d, v%d" % (o0 + k, o0 + k, o1 + k))
        for k in range(4):
            e("v_min_u32 v%d, -2, v%d" % (o0 + k, o0 + k))
        g.exec_lanes(4)
        if cfg.LOC:
            e("s_add_u32 s%d, s%d, 0x%x" % (S_T0, S_P0, OBL - OB))
            g.vmem("buffer_store_dwordx4 %s, v%d, %s, s%d offen" % (vr(o0, 4), V_T + 1, srd(S_WS), S_T0), counted=False)
            e("s_mov_b32 s%d, s%d" % (S_XO + 2, S_P0))
        else:
            g.vmem("buffer_store_dwordx4 %s, v%d, %s, s%d offen sc1" % (vr(o0, 4), V_T + 1, srd(S_WS), S_P0), counted=False)
        g.exec_all()

        def ob_global():
            g.exec_lanes(4)
            g.vmem("buffer_store_dwordx4 %s, v%d, %s, s%d offen sc1" % (vr(o0, 4), V_T + 1, srd(S_WS), S_XO + 2), counted=False)
            g.exec_all()
        g.stamp()
        if cfg.XEND2 == 2:
            e("s_endpgm")

        og = [V_O, V_O + 4, V_U, V_U + 4]
        e("v_lshrrev_b32 v%d, 1, v%d" % (V_T + 4, V_LANE))
        e("v_lshlrev_b32 v%d, 4, v%d" % (V_T + 4, V_T + 4))
        e("s_lshl_b32 s%d, s%d, 13" % (S_R0, S_KVH))
        e("s_lshl_b32 s%d, s%d, 9" % (S_T1, S_WAVE))
        e("s_add_u32 s%d, s%d, s%d" % (S_R0, S_R0, S_T1))
        e("s_add_u32 s%d, s%d, 0x%x" % (S_R0, S_R0, base + OB))
        e("s_add_u32 s%d, s%d, 4096" % (S_R1, S_R0))
        g.red_addr(V_T + 2, V_T + 3)
        e("v_and_b32 v%d, 7, v%d" % (V_T + 3, V_LANE))
        e("v_lshlrev_b32 v%d, 3, v%d" % (V_T + 3, V_T + 3))
        e("s_lshl_b32 s%d, s%d, 11" % (S_P0, S_KVH))
        e("s_lshl_b32 s%d, s%d, 6" % (S_T1, S_C))
        e("s_add_u32 s%d, s%d, s%d" % (S_P0, S_P0, S_T1))
        e("s_add_u32 s%d, s%d, 0x%x" % (S_P0, S_P0, base + P1))

        def mkob(v):
            return lambda: g.vmem("buffer_load_dwordx4 %s, v%d, %s, s%d offen offset:%d sc1" % (vr(og[v], 4), V_T + 4, srd(S_WS), S_R0 if v < 2 else S_R1, 2048 * (v & 1)), counted=False)
        def mkobl(v):
            return lambda: g.vmem("buffer_load_dwordx4 %s, v%d, %s, s%d offen offset:%d sc1" % (vr(og[v], 4), V_T + 4, srd(S_WS), S_XO if v < 2 else S_XO + 1, 2048 * (v & 1)), counted=False)
        if cfg.LOC:
            e("s_add_u32 s%d, s%d, 0x%x" % (S_XO, S_R0, OBL - OB))
            e("s_add_u32 s%d, s%d, 0x%x" % (S_XO + 1, S_R1, OBL - OB))
        g.poll([(mkob(v), [og[v] + i for i in range(4)]) for v in range(4)], V_T, "ob", cfg.P_OB,
               local=[mkobl(v) for v in range(4)] if cfg.LOC else None, deferred=ob_global)
        for k in (0, 2):
            e("v_pk_add_f32 %s, %s, %s" % (vr(og[0] + k, 2), vr(og[0] + k, 2), vr(og[1] + k, 2)))
            e("v_pk_add_f32 %s, %s, %s" % (vr(og[2] + k, 2), vr(og[2] + k, 2), vr(og[3] + k, 2)))
        for k in (0, 2):
            e("v_pk_add_f32 %s, %s, %s" % (vr(og[0] + k, 2), vr(og[0] + k, 2), vr(og[2] + k, 2)))
        xo = V_B
        for k in (0, 2):
            e("v_cvt_pk_bf16_f32 v%d, v%d, v%d" % (V_T, og[0] + k, og[0] + k + 1))
            e("v_lshlrev_b32 v%d, 16, v%d" % (xo + k, V_T))
            e("v_and_b32 v%d, 0xffff0000, v%d" % (xo + k + 1, V_T))
        acc = V_O
        g.gemv8([V_WO + 4 * i for i in range(4)], [xo + i for i in range(4)], V_U, acc)
        g.reduce8_to_lds(acc, V_T + 2, L_RED + 256)
        g.sum4_pairs(V_U, V_O, V_T + 3, L_RED + 256)
        e("v_min_u32 v%d, -2, v%d" % (V_U, V_U))
        e("v_min_u32 v%d, -2, v%d" % (V_U + 1, V_U + 1))
        wave0_store("buffer_store_dwordx2 %s, v%d, %s, s%d offen sc1" % (vr(V_U, 2), V_T + 3, srd(S_WS), S_P0), 8)
        if it == 0:
            lab = g.newlabel("clr1")
            e("s_cmp_ge_u32 s2, 224")
            e("s_cbranch_scc1 %s" % lab)
            for k in range(4):
                e("v_mov_b32 v%d, -1" % (SCR + k))
            e("v_lshlrev_b32 v%d, 4, v0" % (SCR + 4))
            e("s_mul_i32 s%d, s2, 12288" % S_T0)
            e("s_add_u32 s%d, s%d, 0x%x" % (S_T0, S_T0, ITS))
            for k in range(3):
                g.vmem("buffer_store_dwordx4 %s, v%d, %s, s%d offen sc1" % (vr(SCR, 4), SCR + 4, srd(S_WS), S_T0), counted=False)
                if k < 2:
                    e("s_add_u32 s%d, s%d, 4096" % (S_T0, S_T0))
            g.label(lab)
        g.stamp()
        if cfg.XEND2 == 3:
            e("s_endpgm")

        x_gather(base + P1, 8, cfg.P_X1)
        slot = x_to_lds_and_barrier()
        if it == 0 and cfg.PF:
            sv_we = st.we
            st.we = 0
            for u in range(127 - NVR - cfg.PF + 1, 127 - NVR + 1):
                g.throttle(1)
                st.load("V", u, Tile("v", V_Q), "")
            st.we = sv_we
        g.stamp()
        mine, t = V_B, V_U
        accg, accu = SCR, V_O
        e("v_and_b32 v%d, 15, v%d" % (V_T, V_LANE))
        e("v_lshlrev_b32 v%d, 3, v%d" % (V_T, V_T))
        e("ds_read_b64 %s, v%d offset:%d" % (vr(t, 2), V_T, L_ST + 128 * slot))
        e("v_lshrrev_b32 v%d, 2, v%d" % (V_T + 1, V_LANE))
        e("v_lshlrev_b32 v%d, 3, v%d" % (V_T + 1, V_T + 1))
        e("s_lshl_b32 s%d, s%d, 2" % (S_T0, S_KQ))
        e("s_add_u32 s%d, s%d, s%d" % (S_T0, S_T0, S_WAVE))
        e("s_lshl_b32 s%d, s%d, 7" % (S_T0, S_T0))
        e("v_add_u32 v%d, s%d, v%d" % (V_T + 1, S_T0, V_T + 1))
        e("ds_read_b64 %s, v%d offset:%d" % (vr(mine, 2), V_T + 1, L_XL))
        e("v_lshrrev_b32 v%d, 5, v%d" % (V_T + 2, V_LANE))
        e("v_lshlrev_b32 v%d, 7, v%d" % (V_T + 2, V_T + 2))
        e("v_and_b32 v%d, 3, v%d" % (V_T + 3, V_LANE))
        e("v_lshl_add_u32 v%d, v%d, 5, v%d" % (V_T + 2, V_T + 3, V_T + 2))
        e("v_bfe_u32 v%d, v%d, 4, 1" % (V_T + 3, V_LANE))
        e("v_lshl_add_u32 v%d, v%d, 4, v%d" % (V_T + 2, V_T + 3, V_T + 2))
        e("s_lshl_b32 s%d, s%d, 8" % (S_T0, S_WAVE))
        e("v_add_u32 v%d, s%d, v%d" % (V_T + 2, S_T0, V_T + 2))
        e("v_and_b32 v%d, 1, v%d" % (V_T + 3, V_LANE))
        e("v_lshlrev_b32 v%d, 7, v%d" % (V_T + 3, V_T + 3))
        e("v_lshrrev_b32 v%d, 1, v%d" % (V_T + 4, V_LANE))
        e("v_lshl_add_u32 v%d, v%d, 2, v%d" % (V_T + 3, V_T + 4, V_T + 3))
        e("v_lshlrev_b32 v%d, 2, v%d" % (V_T + 5, V_LANE))
        e("s_mul_i32 s%d, s%d, 14336" % (S_P0, S_KQ))
        e("s_lshl_b32 s%d, s%d, 8" % (S_T0, S_CB))
        e("s_add_u32 s%d, s%d, s%d" % (S_P0, S_P0, S_T0))
        e("s_add_u32 s%d, s%d, 0x%x" % (S_P0, S_P0, base + GU))
        g.lgkm0()
        ln_finish(slot, mine, 2, t)
        g.gemv8([W13, W13 + 4], [mine, mine + 1], V_B + 2, accg)
        g.gemv8([W13 + 8, W13 + 12], [mine, mine + 1], V_B + 2, accu)
        g.nop(3)
        for j in range(8):
            e("v_permlane32_swap_b32 v%d, v%d" % (accg + j, accu + j))
        for j in range(0, 8, 2):
            e("v_pk_add_f32 %s, %s, %s" % (vr(accg + j, 2), vr(accg + j, 2), vr(accu + j, 2)))
        g.nop(1)
        for j in range(4):
            e("v_permlane16_swap_b32 v%d, v%d" % (accg + j, accg + j + 4))
        g.nop(1)
        for j in range(0, 4, 2):
            e("v_pk_add_f32 %s, %s, %s" % (vr(accg + j, 2), vr(accg + j, 2), vr(accg + j + 4, 2)))
        g.nop(1)
        g.ror_red([accg + j for j in range(4)], [8, 4], "v_add_f32")
        e("ds_write_b128 v%d, %s offset:%d" % (V_T + 2, vr(accg, 4), L_GU))
        g.lgkm0()
        e("s_barrier")
        for w in range(4):
            e("ds_read_b32 v%d, v%d offset:%d" % (V_O + w, V_T + 3, L_GU + 256 * w))
        g.lgkm0()
        e("v_pk_add_f32 %s, %s, %s" % (vr(V_O, 2), vr(V_O, 2), vr(V_O + 2, 2)))
        e("v_add_f32 v%d, v%d, v%d" % (V_O, V_O, V_O + 1))
        e("v_min_u32 v%d, -2, v%d" % (V_O, V_O))
        e("s_mov_b32 s%d, s%d" % (S_R1, S_P0))
        e("s_add_u32 s%d, s%d, 0x%x" % (S_T2, S_P0, GUL - GU))
        wave0_store("buffer_store_dword v%d, v%d, %s, s%d offen" % (V_O, V_T + 5, srd(S_WS), S_T2), 64,
                    "s_cmp_ge_u32 s%d, 28" % S_C)

        def gu_global():
            wave0_store("buffer_store_dword v%d, v%d, %s, s%d offen sc1" % (V_O, V_T + 5, srd(S_WS), S_R1), 64,
                        "s_cmp_ge_u32 s%d, 28" % S_C)
        g.stamp()

        hg, acc = V_B, V_O
        gu = [SCR, SCR + 4, V_U, V_U + 4]
        e("v_lshrrev_b32 v%d, 1, v%d" % (V_T + 4, V_LANE))
        e("v_min_u32 v%d, 27, v%d" % (V_T + 4, V_T + 4))
        e("v_lshlrev_b32 v%d, 4, v%d" % (V_T + 4, V_T + 4))
        e("v_add_u32 v%d, 0x%x, v%d" % (V_T + 1, GUL - GU, V_T + 4))
        e("s_mul_i32 s%d, s%d, %d" % (S_R0, S_KS, 224 * 8))
        e("s_mul_i32 s%d, s%d, %d" % (S_T1, S_WAVE, 56 * 8))
        e("s_add_u32 s%d, s%d, s%d" % (S_R0, S_R0, S_T1))
        e("s_add_u32 s%d, s%d, 0x%x" % (S_XO, S_R0, base + GU))
        for k in range(1, 4):
            e("s_add_u32 s%d, s%d, 14336" % (S_XO + k, S_XO + k - 1))
        g.red_addr(V_T + 2, V_T + 3)
        e("v_and_b32 v%d, 7, v%d" % (V_T + 3, V_LANE))
        e("v_lshlrev_b32 v%d, 3, v%d" % (V_T + 3, V_T + 3))
        e("s_lshl_b32 s%d, s%d, 11" % (S_P0, S_KS))
        e("s_lshl_b32 s%d, s%d, 6" % (S_T1, S_CN))
        e("s_add_u32 s%d, s%d, s%d" % (S_P0, S_P0, S_T1))
        e("s_add_u32 s%d, s%d, 0x%x" % (S_P0, S_P0, base + P2))

        def mkgu(k):
            return lambda: g.vmem("buffer_load_dwordx4 %s, v%d, %s, s%d offen sc1" % (vr(gu[k], 4), V_T + 4, srd(S_WS), S_XO + k), counted=False)
        def mkgul(k):
            return lambda: g.vmem("buffer_load_dwordx4 %s, v%d, %s, s%d offen sc1" % (vr(gu[k], 4), V_T + 1, srd(S_WS), S_XO + k), counted=False)
        g.poll([(mkgu(k), [gu[k] + i for i in range(4)]) for k in range(4)], V_T, "hb", cfg.P_GU,
               local=[mkgul(k) for k in range(4)], deferred=gu_global)
        for k in (0, 2):
            e("v_pk_add_f32 %s, %s, %s" % (vr(gu[0] + k, 2), vr(gu[0] + k, 2), vr(gu[1] + k, 2)))
            e("v_pk_add_f32 %s, %s, %s" % (vr(gu[2] + k, 2), vr(gu[2] + k, 2), vr(gu[3] + k, 2)))
        for k in (0, 2):
            e("v_pk_add_f32 %s, %s, %s" % (vr(gu[0] + k, 2), vr(gu[0] + k, 2), vr(gu[2] + k, 2)))
        G0, U0, G1, U1, ta, tb = SCR, SCR + 1, SCR + 2, SCR + 3, V_U, V_U + 1
        e("v_cvt_pk_bf16_f32 v%d, v%d, v%d" % (ta, G0, U0))
        e("v_cvt_pk_bf16_f32 v%d, v%d, v%d" % (tb, G1, U1))
        e("v_lshlrev_b32 v%d, 16, v%d" % (G0, ta))
        e("v_lshlrev_b32 v%d, 16, v%d" % (G1, tb))
        e("v_and_b32 v%d, 0xffff0000, v%d" % (U0, ta))
        e("v_and_b32 v%d, 0xffff0000, v%d" % (U1, tb))
        e("v_mul_f32 v%d, 0x%x, v%d" % (ta, f32bits(-LOG2E), G0))
        e("v_mul_f32 v%d, 0x%x, v%d" % (tb, f32bits(-LOG2E), G1))
        e("v_exp_f32 v%d, v%d" % (ta, ta))
        e("v_exp_f32 v%d, v%d" % (tb, tb))
        g.nop(1)
        e("v_add_f32 v%d, 1.0, v%d" % (ta, ta))
        e("v_add_f32 v%d, 1.0, v%d" % (tb, tb))
        e("v_rcp_f32 v%d, v%d" % (ta, ta))
        e("v_rcp_f32 v%d, v%d" % (tb, tb))
        g.nop(1)
        e("v_mul_f32 v%d, v%d, v%d" % (G0, G0, ta))
        e("v_mul_f32 v%d, v%d, v%d" % (G1, G1, tb))
        e("v_cvt_pk_bf16_f32 v%d, v%d, v%d" % (ta, G0, G1))
        e("v_lshlrev_b32 v%d, 16, v%d" % (G0, ta))
        e("v_and_b32 v%d, 0xffff0000, v%d" % (G1, ta))
        e("v_mul_f32 v%d, v%d, v%d" % (G0, G0, U0))
        e("v_mul_f32 v%d, v%d, v%d" % (G1, G1, U1))
        e("v_cvt_pk_bf16_f32 v%d, v%d, v%d" % (ta, G0, G1))
        e("v_cmp_gt_u32 vcc, 56, v%d" % V_LANE)
        e("s_nop 1")
        e("v_cndmask_b32 v%d, 0, v%d, vcc" % (ta, ta))
        e("v_lshlrev_b32 v%d, 16, v%d" % (hg, ta))
        e("v_and_b32 v%d, 0xffff0000, v%d" % (hg + 1, ta))
        g.gemv8([W2R, W2R + 4], [hg, hg + 1], V_B + 2, acc)
        g.reduce8_to_lds(acc, V_T + 2, L_RED + 512)
        g.sum4_pairs(V_U, V_O, V_T + 3, L_RED + 512)
        e("v_min_u32 v%d, -2, v%d" % (V_U, V_U))
        e("v_min_u32 v%d, -2, v%d" % (V_U + 1, V_U + 1))
        wave0_store("buffer_store_dwordx2 %s, v%d, %s, s%d offen sc1" % (vr(V_U, 2), V_T + 3, srd(S_WS), S_P0), 8)
        g.stamp()

    LAG = 2
    ck = {"pos": None, "idx": None}

    def checkpoint(cur, last=False):
        if not cfg.DYN:
            return
        if ck["pos"] is not None:
            g.wait_side(ck["pos"])
            e("s_bitset0_b32 s%d, 4" % S_XCC)
            if not last:
                lab = g.newlabel("ck")
                e("v_cmp_lt_i32 vcc, 0x%x, v%d" % (ck["idx"] + cfg.DTH + 0x0, V_T + 5))
                e("s_bcnt1_i32_b32 s%d, vcc_lo" % S_T0)
                if cfg.DCG:
                    e("s_bcnt1_i32_b32 s%d, vcc_hi" % S_T1)
                    e("s_cmp_ge_u32 s%d, %d" % (S_T1, 4 * cfg.DCG))
                    e("s_cselect_b32 s%d, 32, s%d" % (S_T0, S_T0))
                e("s_cmp_lt_u32 s%d, %d" % (S_T0, cfg.DCN))
                e("s_cbranch_scc1 %s" % lab)
                e("s_bitset1_b32 s%d, 4" % S_XCC)
                g.label(lab)
        if last:
            st.dyn = False
            ck["pos"] = None
            return
        e("v_and_b32 v%d, 31, v%d" % (V_T + 5, V_LANE))
        e("v_lshl_add_u32 v%d, v%d, 2, s%d" % (V_T + 5, V_T + 5, S_PRL))
        if cfg.DCG:
            e("v_and_b32 v%d, 7, v%d" % (V_T + 4, V_LANE))
            e("v_lshlrev_b32 v%d, 2, v%d" % (V_T + 4, V_T + 4))
            e("v_add_u32 v%d, 0x%x, v%d" % (V_T + 4, PRG + 1024, V_T + 4))
            e("v_cndmask_b32 v%d, v%d, v%d, s[%d:%d]" % (V_T + 5, V_T + 5, V_T + 4, S_HI, S_HI + 1))
        e("v_mov_b32 v%d, %s" % (V_T + 4, str(cur) if cur <= 64 else "0x%x" % cur))
        wave0_store("buffer_store_dword v%d, v%d, %s, s%d offen" % (V_T + 4, V_LANE, srd(S_WS), S_PRS), 1)
        if cfg.DCG:
            wave0_store("buffer_store_dword v%d, v%d, %s, s%d offen sc1" % (V_T + 4, V_LANE, srd(S_WS), S_PRG), 1,
                        "s_cmp_lg_u32 s%d, 5" % S_C)
        ck["pos"], ck["idx"] = g.vm, cur
        g.vmem("buffer_load_dword v%d, v%d, %s, 0 offen sc1" % (V_T + 5, V_T + 5, srd(S_WS)), counted=False)
        st.dyn = True

    if cfg.DYN:
        e("s_lshl_b32 s%d, s%d, 7" % (S_PRL, S_KVH))
        e("s_add_u32 s%d, s%d, 0x%x" % (S_PRL, S_PRL, PRG))
        e("s_lshl_b32 s%d, s%d, 2" % (S_PRS, S_C))
        e("s_add_u32 s%d, s%d, s%d" % (S_PRS, S_PRS, S_PRL))
        e("s_lshl_b32 s%d, s%d, 2" % (S_PRG, S_KVH))
        e("s_add_u32 s%d, s%d, 0x%x" % (S_PRG, S_PRG, PRG + 1024))
        e("s_mov_b32 s%d, 0" % S_HI)
        e("s_mov_b32 s%d, -1" % (S_HI + 1))
    nextck = [0]

    def maybe_ck(cur=None, end=None):
        if cur is None:
            cur, end = state["issued"], cfg.DEND
        if cfg.DYN and cur >= nextck[0] and cur < end:
            checkpoint(cur)
            nextck[0] = cur + cfg.DSTEP
        elif cfg.DYN and cur >= end and st.dyn:
            checkpoint(cur, last=True)
    wpieces = []
    if cfg.WPOS == 2:
        keepL, keepvm, keepdone = g.L, g.vm, g.vm_done
        g.L, g.vm, g.vm_done = [], 0, 0
        load_wo(V_WO, V_T)
        load_w13(V_W13, V_T)
        load_w2(V_W2, V_T)
        cur = []
        for ln in g.L:
            cur.append(ln)
            if "buffer_load" in ln:
                wpieces.append(cur)
                cur = []
        assert not cur and len(wpieces) == 10
        g.L, g.vm, g.vm_done = keepL, keepvm, keepdone
    for t in range(128 + LAG):
        if t < 128:
            issue_upto(cfg.DEPTH1)
            g.wait_vm(seqs[t])
            tile, _k = dest[t]
            qk_mfma(t, tile, t)
            if t < NKL and not cfg.XNODS:
                e("ds_write_b128 v%d, %s offset:%d" % (V_LT, tile.r(), t * 1024))
            consumed(t)
            if cfg.WPOS == 5 and t == 8: load_wo(V_WO, V_T)
            if cfg.WPOS == 1:
                if t == 8: load_wo(V_WO, V_T)
                if t == 20: load_w13(V_W13, V_T)
                if t == 32: load_w2(V_W2, V_T)
            if cfg.WPOS == 2 and t >= cfg.W0 and (t - cfg.W0) % cfg.WSP == 0 and wpieces:
                g.throttle(1)
                for ln in wpieces.pop(0):
                    g.L.append(ln)
                g.vm += 1
            if t == cfg.CLRI:
                e("v_mov_b32 v%d, 0" % (V_U + 5))
                clrq = g.vm
                clr_issue(False)
            if t == cfg.CLRW:
                clr_wait(clrq)
            if t == 116:
                if not cfg.STAMP:
                    pool.extend(utiles)
                else:
                    pool.append(utiles[0])
            issue_upto(cfg.DEPTH1)
            if t >= 36:
                maybe_ck()
        else:
            g.nop(4)
        if t - LAG >= 0:
            qk_adds(t - LAG, t - LAG)
        else:
            g.nop(3)
    for x in dtiles:
        release(x)
    issue_upto(cfg.DEPTH1)
    g.stamp()
    softmax(0)
    g.lgkm0()
    g.stamp()

    def v_side_jobs(n, it, jobs):
        if n == 104:
            ml_addr(it)
            for k in range(8):
                e("v_mov_b32 v%d, -1" % (V_U + k))
            jobs["ml"] = g.vm
            ml_issue(False)
        if n == 120:
            ml_try_check(jobs["ml"])
            rec_addr_pre(it, V_U + 2)

    jobs = {}
    pv_b(0, 0)
    for u in range(128):
        i = 128 + u
        if u + 1 < 128:
            pv_b(u + 1, (u + 1) & 1)
        else:
            g.nop(2)
        g.wait_vm(seqs[i])
        tile, _k = dest[i]
        pv_mfma(tile, u & 1)
        if u == 40:
            for x in utiles:
                retire.add(id(x))
            pool[:] = [x for x in pool if id(x) not in retire]
        consumed(i)
        if u % 16 == 15 and u < 112:
            release(ytiles[u // 16])
        issue_upto(cfg.DEPTH1V)
        maybe_ck()
        vres[u] = tile
        if u == 104:
            assert all(id(dest[j][0]) not in retire for j in range(i + 1, state["issued"]))
        v_side_jobs(u, 0, jobs)
    g.stamp()
    if cfg.XEND:
        g.stamp()
        e("s_endpgm")
    pfn = [127 - NVR - cfg.PF0]

    def shadow(name):
        if name in ("a1", "q1") or not cfg.PFS:
            return
        sv_we = st.we
        st.we = 0
        for _ in range(cfg.PFS):
            st.load("V", pfn[0], Tile("v", V_Q), "")
            pfn[0] -= 1
        st.we = sv_we
    g.shadow = shadow
    chain(0, V_W13, V_W2, V_Y)

    if cfg.LOC and cfg.LWARM:
        q_pub_addr(1)
        e("s_add_u32 s%d, s%d, 0x%x" % (S_T0, S_P0, QBL - QB))
        e("v_mov_b32 v%d, 0" % (V_B + 1))
        g.vmem("buffer_load_dword v%d, v%d, %s, s%d offen sc1" % (V_B, V_B + 1, srd(S_WS), S_T0), counted=False)
    x_gather(P2, 8, cfg.P_X2)
    slot = x_to_lds_and_barrier()
    q_stage_compute(slot, V_WQ, V_Y)
    q_pub_addr(1)
    if cfg.LOC:
        e("s_add_u32 s%d, s%d, 0x%x" % (S_XO, S_P0, QBL - QB))
        wave0_store("buffer_store_dword v%d, v%d, %s, s%d offen" % (V_U + 2, V_U + 3, srd(S_WS), S_XO), 8)
    else:
        q_publish()
    q_gather_addr(1, V_T + 4)
    e("s_add_u32 s%d, s%d, 0x%x" % (S_XO, S_R0, QBL - QB))
    g.poll([(lambda: q_gather_issue(V_T + 4), [V_Q + i for i in range(4)])], V_T, "q1", cfg.P_Q,
           local=[lambda: g.vmem("buffer_load_dwordx4 %s, v%d, %s, s%d offen sc1" % (vr(V_Q, 4), V_T + 4, srd(S_WS), S_XO), counted=False)] if cfg.LOC else None, deferred=q_publish)
    g.stamp()

    st.we = cfg.WE2
    st.p1 = False
    st.wo = cfg.WO2
    g.shadow = None
    resident_v = list(range(127, 127 - NVR, -1))
    vloads = list(range(127 - NVR, -1, -1))
    free, vd, vs = [], {}, {}
    st2 = {"issued": 0, "consumed": 0}

    def issue2(maxn=1000):
        while maxn > 0 and st2["issued"] < len(vloads) and free and st2["issued"] - st2["consumed"] < cfg.DEPTH2:
            maxn -= 1
            u = vloads[st2["issued"]]
            tile = free.pop(0)
            g.throttle(1)
            vs[u] = st.load("V", u, tile, "" if (u >= cfg.VDEF and vdef(u)) else cfg.FV2)
            vd[u] = tile
            st2["issued"] += 1
    NLR = 4
    korder = list(range(112, 128)) + list(range(NKL, 112)) + list(range(NKL))
    if cfg.PARK:
        dring[0] = [V_U, V_O, V_U + 4, V_O + 4]
    ldsring = [kslot(t) for t in korder[:NLR]]
    lds_issued = 0
    for n in range(128 + LAG):
        if n < 128:
            t = korder[n]
            if n < NKR:
                tile = kslot(t)
                qk_mfma(t, tile, n)
                if n >= NLR:
                    parked = [u for u in resident_v if any(vres[u] is y for y in ytiles)]
                    if parked:
                        u = parked[0]
                        src = vres[u]
                        for k in range(4):
                            if tile.kind == "a":
                                e("v_accvgpr_write_b32 a%d, v%d" % (tile.base + k, src.base + k))
                            else:
                                e("v_mov_b32 v%d, v%d" % (tile.base + k, src.base + k))
                        vres[u] = tile
                    else:
                        free.append(tile)
                    if n < cfg.KL0 or n % cfg.KLD == 0:
                        issue2(1)
                if n == NLR + 2:
                    for k in range(min(NLR, NKL)):
                        e("ds_read_b128 %s, v%d offset:%d" % (ldsring[k].r(), V_LT, k * 1024))
                    lds_issued = min(NLR, NKL)
            else:
                k = n - NKR
                tile = ldsring[k % NLR]
                e("s_waitcnt lgkmcnt(%d)" % (lds_issued - k - 1))
                qk_mfma(t, tile, n)
                if lds_issued < NKL:
                    e("ds_read_b128 %s, v%d offset:%d" % (tile.r(), V_LT, lds_issued * 1024))
                    lds_issued += 1
                if n % cfg.KLD == 0:
                    issue2(1)
        else:
            g.nop(4)
        if n - LAG >= 0:
            qk_adds(korder[n - LAG], n - LAG)
        else:
            g.nop(3)
    free += ldsring
    issue2(cfg.SML)
    g.stamp()
    softmax(1, lambda: issue2(1))
    g.lgkm0()
    g.stamp()
    order = resident_v + vloads
    jobs = {}
    pv_b(order[0], 0)
    for n, u in enumerate(order):
        if n + 1 < 128:
            pv_b(order[n + 1], (n + 1) & 1)
        else:
            g.nop(2)
        if u in vs:
            g.wait_vm(vs[u])
            tile = vd[u]
            st2["consumed"] += 1
        else:
            tile = vres[u]
        pv_mfma(tile, n & 1)
        free.append(tile)
        issue2()
        if cfg.DYN2:
            maybe_ck(256 + st2["issued"], 256 + cfg.DEND2)
        v_side_jobs(n, 1, jobs)
    g.stamp()
    chain(1, V_W13, V_W2, V_Y)

    if cfg.XPL:
        e("s_getreg_b32 s72, hwreg(HW_REG_XCC_ID)")
        e("s_and_b32 s72, s72, 7")
        e("s_and_b32 s73, s2, 7")
        e("s_cmp_eq_u32 s72, s73")
        e("s_cbranch_scc1 L_xpl_ok")
        e("s_memrealtime s[72:73]")
        g.lgkm0()
        e("s_add_u32 s74, s72, 4000")
        g.label("L_xpl")
        e("s_memrealtime s[76:77]")
        g.lgkm0()
        e("s_sub_u32 s78, s74, s76")
        e("s_cmp_gt_i32 s78, 0")
        e("s_cbranch_scc1 L_xpl")
        g.label("L_xpl_ok")
    def ldump():
        if not cfg.LSTAMP:
            return
        e("v_lshlrev_b32 v%d, 2, v0" % (V_T + 2))
        e("s_lshl_b32 s%d, s2, 10" % S_T0)
        e("s_add_u32 s%d, s%d, 0x%x" % (S_T0, S_T0, STAMP_OFF))
        e("buffer_store_dword v%d, v%d, %s, s%d offen" % (V_DS, V_T + 2, srd(S_WS), S_T0))
    if cfg.LSTAMP:
        e("v_writelane_b32 v%d, s%d, 21" % (V_DS, S_STAMP))
    ldump()
    e("s_cmp_lg_u32 s2, 0")
    e("s_cbranch_scc1 L_end")
    x_gather(ITS + P2, 8, cfg.P_XF)
    e("v_lshlrev_b32 v%d, 2, v0" % (V_T + 1))
    g.vmem("buffer_store_dword v%d, v%d, %s, 0 offen" % (V_T, V_T + 1, srd(S_OUT)))
    g.stamp()
    ldump()
    if cfg.DSTAMP:
        sel = [1, 2, 3, 4, 6, 7, 8, 10, 11, 12, 14, 16, 17, 18, 20, 21]
        e("v_mov_b32 v%d, 0" % (V_T + 1))
        for k, i in enumerate(sel):
            e("v_readlane_b32 s%d, v%d, %d" % (S_T0, V_DS, i))
            e("v_readlane_b32 s%d, v%d, 0" % (S_T1, V_DS))
            e("s_nop 3")
            e("s_sub_u32 s%d, s%d, s%d" % (S_T0, S_T0, S_T1))
            e("v_mov_b32 v%d, s%d" % (V_T, S_T0))
            e("s_cmp_lg_u32 s%d, 0" % S_WAVE)
            e("s_cbranch_scc1 L_ds%d" % k)
            e("buffer_store_dword v%d, v%d, %s, 0 offen offset:%d" % (V_T, V_T + 1, srd(S_DBG), 4 * k))
            g.label("L_ds%d" % k)
    if cfg.XDE:
        if cfg.XENC >= 0:
            e("v_readlane_b32 s72, v%d, %d" % (V_DS, cfg.XENC))
            e("s_nop 3")
        else:
            e("s_memrealtime s[72:73]")
            g.lgkm0()
        e("s_add_u32 s74, s72, %d" % (cfg.XDE * 100))
        g.label("L_xde")
        e("s_memrealtime s[76:77]")
        g.lgkm0()
        e("s_sub_u32 s78, s74, s76")
        e("s_cmp_gt_i32 s78, 0")
        e("s_cbranch_scc1 L_xde")
    g.label("L_end")
    e("s_endpgm")

    out.append("\n".join(g.L))
    out.append('.section .rodata,"a"\n.p2align 6\n.amdhsa_kernel %s' % KNAME)
    out.append("  .amdhsa_next_free_vgpr 512\n  .amdhsa_next_free_sgpr 102\n  .amdhsa_accum_offset 256\n"
               "  .amdhsa_group_segment_fixed_size 0\n  .amdhsa_kernarg_size 96\n  .amdhsa_user_sgpr_count 2\n"
               "  .amdhsa_user_sgpr_kernarg_segment_ptr 1\n  .amdhsa_system_sgpr_workgroup_id_x 1\n.end_amdhsa_kernel")
    return "\n".join(out) + "\n"


if __name__ == "__main__":
    cfg = Cfg()
    outp = "interleave_layers__gqa_block_cached__glu_gated_swiglu__decode.s"
    for a in sys.argv[1:]:
        if a.startswith("out="):
            outp = a[4:]
            continue
        k, v = a.split("=", 1)
        cur = getattr(cfg, k)
        if isinstance(cur, bool):
            v = v in ("1", "True", "true")
        elif isinstance(cur, int):
            v = int(v)
        setattr(cfg, k, v)
    s = generate(cfg)
    open(outp, "w").write(s)
    print("wrote", outp, len(s), "bytes", s.count("\n"), "lines")
```
